```python
import torch

def _softmax(x, axis=-1):
    return torch.softmax(x, dim=axis)
def _gelu(x):
    return torch.nn.functional.gelu(x, approximate="tanh")
def _silu(x):
    return torch.nn.functional.silu(x)
def _sigmoid(x):
    return torch.sigmoid(x)
def _layernorm(x, axis=-1, eps=1e-5):
    m = x.mean(dim=axis, keepdim=True)
    v = x.var(dim=axis, keepdim=True, unbiased=False)
    return (x - m) / torch.sqrt(v + eps)
def _scatter_add(tgt, idx, src, axis=0):
    return tgt.clone().index_add_(axis, idx, src)
def _segment_sum(src, seg, n):
    out = torch.zeros((n,) + src.shape[1:], dtype=src.dtype)
    return out.index_add_(0, seg, src)
def _pad(x, pw):
    flat = tuple(v for pair in reversed(pw) for v in pair)
    return torch.nn.functional.pad(x, flat)

kernel_name = 'concat_heads__mha_block_cached__sliding_block_cached__decode'

def setup_inputs():

    _w = (lambda a: (lambda t: t.to(torch.bfloat16) if t.is_floating_point() else t)(torch.as_tensor(a)))
    def _A_setup():
        B, Sq, D = 4, 1, 512
        H, Sk, Dh = 32, 4096, 128
        return {
            "x": _w((lambda *s: torch.randn(*s, dtype=torch.bfloat16) * 0.8)(B, Sq, D)),
            "k_cache": _w((lambda *s: torch.randn(*s, dtype=torch.bfloat16) * 1.6)(B, H, Sk, Dh)),
            "v_cache": _w((lambda *s: torch.randn(*s, dtype=torch.bfloat16) * 0.2)(B, H, Sk, Dh)),
            "wq": _w((lambda *s: torch.randn(*s, dtype=torch.bfloat16) * 1.6)(D, H * Dh) * (D ** -0.5)),
            "wo": _w((lambda *s: torch.randn(*s, dtype=torch.bfloat16) * 0.2)(H * Dh, D) * ((H * Dh) ** -0.5)),
        }
    _A_in = _A_setup()

    def _B_setup():
        B, Sq, D = 4, 1, 512
        Hq, Hkv, Sk, Dh = 32, 8, 4096, 128
        assert Hq % Hkv == 0, (Hq, Hkv)
        return {
            "x": _w((lambda *s: torch.randn(*s, dtype=torch.bfloat16) * 0.8)(B, Sq, D)),
            "k_cache": _w((lambda *s: torch.randn(*s, dtype=torch.bfloat16) * 1.6)(B, Hkv, Sk, Dh)),
            "v_cache": _w((lambda *s: torch.randn(*s, dtype=torch.bfloat16) * 0.2)(B, Hkv, Sk, Dh)),
            "wq": _w((lambda *s: torch.randn(*s, dtype=torch.bfloat16) * 1.6)(D, Hq * Dh) * (D ** -0.5)),
            "wo": _w((lambda *s: torch.randn(*s, dtype=torch.bfloat16) * 0.2)(Hq * Dh, D) * ((Hq * Dh) ** -0.5)),
        }
    _B_in = _B_setup()

    return {
        "A_x": _A_in["x"],
        "A_k_cache": _A_in["k_cache"],
        "A_v_cache": _A_in["v_cache"],
        "A_wq": _A_in["wq"],
        "A_wo": _A_in["wo"],
        "B_x": _B_in["x"],
        "B_k_cache": _B_in["k_cache"],
        "B_v_cache": _B_in["v_cache"],
        "B_wq": _B_in["wq"],
        "B_wo": _B_in["wo"],
    }

def reference(A_x, A_k_cache, A_v_cache, A_wq, A_wo, B_x, B_k_cache, B_v_cache, B_wq, B_wo):
    def _A_ref(x, k_cache, v_cache, wq, wo):
        B, Sq, D = x.shape
        H, Dh = 32, 128
        q = (lambda x, *d: x.permute(*d))((x @ wq).reshape(B, Sq, H, Dh), 0, 2, 1, 3)
        scores = torch.einsum("bhqd,bhkd->bhqk", q, k_cache) * (Dh ** -0.5)
        p = _softmax(scores, axis=-1)
        o = torch.einsum("bhqk,bhkd->bhqd", p, v_cache)
        return (lambda x, *d: x.permute(*d))(o, 0, 2, 1, 3).reshape(B, Sq, H * Dh) @ wo

    def _B_ref(x, k_cache, v_cache, wq, wo):
        B, Sq, D = x.shape
        Hq, Dh = 32, 128
        Hkv, Sk = k_cache.shape[1], k_cache.shape[2]
        W = min(4096, max(256, Sk // 4))
        rep = Hq // Hkv
        q = (lambda x, *d: x.permute(*d))((x @ wq).reshape(B, Sq, Hq, Dh), 0, 2, 1, 3)
        k = (lambda x, n, axis: torch.repeat_interleave(x, n, dim=axis))(k_cache[:, :, Sk - W:, :], rep, axis=1)
        v = (lambda x, n, axis: torch.repeat_interleave(x, n, dim=axis))(v_cache[:, :, Sk - W:, :], rep, axis=1)
        scores = torch.einsum("bhqd,bhkd->bhqk", q, k) * (Dh ** -0.5)
        p = _softmax(scores, axis=-1)
        o = torch.einsum("bhqk,bhkd->bhqd", p, v)
        return (lambda x, *d: x.permute(*d))(o, 0, 2, 1, 3).reshape(B, Sq, Hq * Dh) @ wo

    a = _A_ref(A_x, A_k_cache, A_v_cache, A_wq, A_wo)
    b = _B_ref(B_x, B_k_cache, B_v_cache, B_wq, B_wo)
    return torch.concatenate([a, b], axis=-1)
```

```python
import re

_RNG = re.compile(r'\b([vsa])\[(\d+):(\d+)\]')
_ONE = re.compile(r'\b([vsa])(\d+)\b')

def regs_of(txt):
    out = set()
    for m in _RNG.finditer(txt):
        for i in range(int(m.group(2)), int(m.group(3)) + 1):
            out.add((m.group(1), i))
    txt2 = _RNG.sub(' ', txt)
    for m in _ONE.finditer(txt2):
        out.add((m.group(1), int(m.group(2))))
    if re.search(r'\bvcc\b', txt2): out.add(('s', 'vcc'))
    if re.search(r'\bexec\b', txt2): out.add(('s', 'exec'))
    return out

TRANS = ('v_exp_f32', 'v_log_f32', 'v_rcp_f32', 'v_rsq_f32', 'v_sqrt_f32')

def split_ops(s):
    ops, depth, cur = [], 0, ''
    for ch in s:
        if ch == '[': depth += 1
        if ch == ']': depth -= 1
        if ch == ',' and depth == 0:
            ops.append(cur.strip()); cur = ''
        else:
            cur += ch
    if cur.strip(): ops.append(cur.strip())
    return ops

class Ins:
    __slots__ = ('text', 'op', 'cls', 'w', 'r', 'rc', 'states', 'dpp', 'data')
    def __init__(self, text):
        self.text = text
        parts = text.split(None, 1)
        op = parts[0]; rest = parts[1] if len(parts) > 1 else ''
        self.op = op; self.states = 1; self.dpp = False; self.rc = set(); self.data = set()
        rest_ops = re.sub(r'\b(quad_perm|op_sel|op_sel_hi|neg_lo|neg_hi):\[[^\]]*\]', '', rest)
        ops = split_ops(rest_ops)
        w, r = set(), set()
        if op == 's_nop':
            self.cls = 'nop'; self.states = int(rest.strip(), 0) + 1
        elif op.startswith('v_mfma'):
            self.cls = 'mfma'
            w = regs_of(ops[0]); r = regs_of(ops[1]) | regs_of(ops[2]); self.rc = regs_of(ops[3])
        elif op.startswith('v_'):
            self.cls = 'valu'
            self.dpp = ('_dpp' in op)
            if op.startswith('v_permlane') and 'swap' in op:
                w = regs_of(ops[0]) | regs_of(ops[1]); r = set(w)
            elif op.startswith('v_cmp'):
                w = regs_of(ops[0]); r = set().union(*[regs_of(o) for o in ops[1:]])
            else:
                w = regs_of(ops[0])
                r = set().union(*[regs_of(o) for o in ops[1:]]) if len(ops) > 1 else set()
                if op.startswith('v_fmac') or self.dpp or op.startswith('v_writelane'):
                    r |= w
                if '_co_' in op:
                    w |= regs_of(ops[1]);
        elif op.startswith('buffer_load') or op.startswith('global_load'):
            self.cls = 'vmem'
            w = regs_of(ops[0]); r = set().union(*[regs_of(o) for o in ops[1:]])
        elif op.startswith('buffer_store') or op.startswith('buffer_atomic'):
            self.cls = 'vmem'
            r = set().union(*[regs_of(o) for o in ops]); self.data = regs_of(ops[0])
            if op.startswith('buffer_atomic') and ' sc0' in text: w = regs_of(ops[0])
        elif op.startswith('ds_'):
            self.cls = 'ds'
            if op.startswith('ds_read') or op.startswith('ds_bpermute') or op.startswith('ds_swizzle') or '_rtn' in op:
                w = regs_of(ops[0]); r = set().union(*[regs_of(o) for o in ops[1:]])
            else:
                r = set().union(*[regs_of(o) for o in ops])
        elif op.startswith('s_'):
            self.cls = 'salu'
            if op.startswith('s_cmp') or op.startswith('s_cbranch') or op in ('s_barrier', 's_waitcnt', 's_branch', 's_endpgm', 's_setprio', 's_sleep'):
                r = regs_of(rest_ops)
            else:
                w = regs_of(ops[0]) if ops else set()
                r = set().union(*[regs_of(o) for o in ops[1:]]) if len(ops) > 1 else set()
                if 'saveexec' in op: w.add(('s', 'exec'))
        else:
            raise ValueError('unknown op ' + text)
        self.w, self.r = w, r

def vonly(s): return {x for x in s if x[0] == 'v'}
def sonly(s): return {x for x in s if x[0] == 's'}

class Emitter:
    def __init__(self):
        self.lines = []
        self.hist = []
        self.vm = []
        self.nins = 0
    def raw(self, s):
        self.lines.append(s)
    def comment(self, s):
        self.lines.append('    ; ' + s)
    def label(self, name, keep_hist=False):
        self.lines.append(name + ':')
    def need(self, ins):
        need = 0; dist = 0
        for p in reversed(self.hist):
            req = 0
            allr = ins.r | ins.rc
            if p.cls == 'valu':
                pv = vonly(p.w); ps = sonly(p.w)
                if ins.cls == 'mfma' and pv & allr: req = max(req, 2)
                if ins.cls == 'valu' and ins.dpp and pv & ins.r: req = max(req, 2)
                if ins.cls == 'valu' and ins.op.startswith('v_permlane') and pv & ins.r: req = max(req, 2)
                if ins.cls == 'valu' and (ins.op.startswith('v_readlane') or ins.op.startswith('v_readfirstlane')) and pv & ins.r: req = max(req, 1)
                if p.op.startswith(TRANS) and ins.cls in ('valu', 'mfma') and pv & allr: req = max(req, 2 if ins.cls == 'mfma' else 1)
                if ps:
                    if ins.cls == 'vmem' and ps & ins.r: req = max(req, 5)
                    if ins.cls == 'valu' and ps & ins.r: req = max(req, 2)
                    if ins.cls == 'valu' and ins.op.startswith(('v_readlane', 'v_writelane')) and ps & ins.r: req = max(req, 4)
                    if ins.cls == 'salu' and ps & ins.r: req = max(req, 1)
            if p.cls == 'mfma':
                if ins.cls == 'mfma':
                    if p.w & ins.r: req = max(req, 8)
                    if p.w & ins.rc and p.w != ins.rc: req = max(req, 6)
                    if p.w & ins.w and p.w != ins.rc: req = max(req, 6)
                elif ins.cls in ('valu', 'vmem', 'ds'):
                    if p.w & (ins.r | ins.w): req = max(req, 8)
                    if ins.cls == 'valu' and p.rc & ins.w: req = max(req, 3)
            if p.cls == 'vmem' and p.data and len(p.data) >= 3:
                if p.data & ins.w: req = max(req, 2)
            if p.cls == 'salu' and ('s', 'exec') in p.w and ins.cls == 'valu' and ins.dpp:
                req = max(req, 0)
            if req - dist > need: need = req - dist
            dist += p.states
            if dist >= 12: break
        return need
    def __call__(self, text, tag=None):
        ins = Ins(text)
        n = self.need(ins)
        if n > 0:
            nop = Ins(f's_nop {n-1}')
            self.lines.append('    ' + nop.text); self.hist.append(nop); self.nins += 1
        self.lines.append('    ' + text)
        self.hist.append(ins); self.nins += 1
        if len(self.hist) > 32: self.hist = self.hist[-32:]
        if ins.cls == 'vmem':
            self.vm.append(tag if tag is not None else object())
    def wait_vm(self, tag):
        if tag not in self.vm: return
        idx = self.vm.index(tag)
        n = len(self.vm) - 1 - idx
        assert n <= 63, n
        self(f's_waitcnt vmcnt({n})')
        self.vm = self.vm[idx+1:]
    def wait_vm_le(self, n):
        if len(self.vm) <= n: return
        self(f's_waitcnt vmcnt({n})')
        self.vm = self.vm[len(self.vm)-n:] if n > 0 else []
    def outstanding(self): return len(self.vm)
    def fence(self):
        self('s_nop 7');
    def text(self): return '\n'.join(self.lines)
```

```python
import sys, math, struct, argparse
from asmlib import Emitter

NAME = 'concat_heads__mha_block_cached__sliding_block_cached__decode'
def f2u(x): return struct.unpack('<I', struct.pack('<f', x))[0]
CSCALE = f2u(math.log2(math.e) / math.sqrt(128.0))

WS_YA = 0
WS_ML = 4*32*3*2048
WS_YB = 0xC1000
WS_SIZE = 1 << 20
L_QP = 0
L_ACC = 16384
L_M = L_ACC + 2048
L_L = L_M + 16
LDS_BYTES = L_L + 16

S_X, S_K, S_V, S_WQ, S_WO, S_WS = 16, 20, 24, 28, 32, 36
def srd(n): return f's[{n}:{n+3}]'

V_LANE = 1; V_KOFF = 2; V_VOFF = 3; V_WQOFF = 4; V_WOOFF = 5
V_B0 = 6; V_B1 = 7; V_SEL = 8
V_T = 12
V_XR = 20
V_Q = 40
V_D = 56
V_QK = 64
V_XV = 72

def vr(a, n): return f'v[{a}:{a+n-1}]'
DPPALL = 'row_mask:0xf bank_mask:0xf'

def make_srd(e, s, lo, hi, off=None, size=None, size_sgpr=None):
    if off is None:
        e(f's_mov_b32 s{s}, s{lo}')
        e(f's_and_b32 s{s+1}, s{hi}, 0xffff')
    else:
        e(f's_add_u32 s{s}, s{lo}, {off}')
        e(f's_addc_u32 s{s+1}, s{hi}, 0')
        e(f's_and_b32 s{s+1}, s{s+1}, 0xffff')
    if size_sgpr is not None: e(f's_mov_b32 s{s+2}, {size_sgpr}')
    else: e(f's_mov_b32 s{s+2}, {size:#x}')
    e(f's_mov_b32 s{s+3}, 0x00020000')

def lane_consts_late(e):
    t = V_T
    e(f'v_and_b32 v{t}, 3, v{V_LANE}')
    e(f'v_lshlrev_b32 v{t}, 4, v{t}')
    e(f'v_mov_b32 v{t+2}, 0xffff')
    e(f'v_mov_b32 v{t+3}, 0')
    e(f'v_lshlrev_b64 v[{V_B0}:{V_B1}], v{t}, v[{t+2}:{t+3}]')
    e(f'v_mov_b32 v{t+1}, 0x0c0c0c0c')
    e(f's_mov_b32 s44, 0x01000100')
    e(f's_mov_b32 s45, 0x03020302')
    e(f'v_bfi_b32 v{V_SEL+0}, v{V_B0}, s44, v{t+1}')
    e(f'v_bfi_b32 v{V_SEL+1}, v{V_B1}, s44, v{t+1}')
    e(f'v_bfi_b32 v{V_SEL+2}, v{V_B0}, s45, v{t+1}')
    e(f'v_bfi_b32 v{V_SEL+3}, v{V_B1}, s45, v{t+1}')
    for i in range(5):
        e(f'v_mov_b32 v{V_XR+4*i}, 0')
        e(f'v_mov_b32 v{V_XR+4*i+1}, 0')

def lds_init(e):
    t = V_T
    e(f'v_lshlrev_b32 v{t}, 2, v0')
    e(f'v_mov_b32 v{t+1}, 0')
    e(f'ds_write_b32 v{t}, v{t+1} offset:{L_ACC}')
    e(f'v_and_b32 v{t}, 12, v{t}')
    e(f'v_mov_b32 v{t+2}, 0xff800000')
    e(f'ds_write_b32 v{t}, v{t+2} offset:{L_M}')
    e(f'ds_write_b32 v{t}, v{t+1} offset:{L_L}')

def gemv_step(e, t, src_reg, wreg, first):
    xs = V_XR + 4*(t & 3)
    par = t & 1
    e(f'v_perm_b32 v{xs+2}, v{src_reg}, v{src_reg}, v{V_SEL+2*par}')
    e(f'v_perm_b32 v{xs+3}, v{src_reg}, v{src_reg}, v{V_SEL+2*par+1}')
    c0 = '0' if first else vr(V_D, 4)
    c1 = '0' if first else vr(V_D+4, 4)
    e(f'v_mfma_f32_16x16x32_bf16 {vr(V_D,4)}, {vr(xs+2,4)}, {vr(wreg,4)}, {c0}')
    e(f'v_mfma_f32_16x16x32_bf16 {vr(V_D+4,4)}, {vr(xs,4)}, {vr(wreg,4)}, {c1}')

def diag_sum(e, dst, d):
    e(f'v_mov_b32_dpp v{dst}, v{d} quad_perm:[0,0,0,0] {DPPALL}')
    e(f'v_mov_b32_dpp v{V_T+7}, v{d+2} quad_perm:[2,2,2,2] {DPPALL}')
    e(f'v_add_f32_dpp v{dst}, v{d+1}, v{dst} quad_perm:[1,1,1,1] {DPPALL}')
    e(f'v_add_f32_dpp v{V_T+7}, v{d+3}, v{V_T+7} quad_perm:[3,3,3,3] {DPPALL}')
    e(f'v_add_f32 v{dst}, v{dst}, v{V_T+7}')

def fold_rg(e):
    for r in range(4):
        e(f'v_permlane32_swap_b32 v{V_D+r}, v{V_D+4+r}')
    for r in range(4):
        e(f'v_add_f32_dpp v{V_D+r}, v{V_D+4+r}, v{V_D+r} row_ror:8 {DPPALL}')

class Stream:
    def __init__(self, e):
        self.e = e; self.items = []; self.pos = 0
    def add(self, tag, fn): self.items.append((tag, fn))
    def issue(self, n=1):
        for _ in range(n):
            if self.pos >= len(self.items): return
            tag, fn = self.items[self.pos]; fn(tag); self.pos += 1
    def issue_until(self, tag):
        idx = [t for t, _ in self.items].index(tag)
        while self.pos <= idx: self.issue()
    def issued(self, tag):
        return [t for t, _ in self.items].index(tag) < self.pos

def gen_A(e, P):
    NG = 19
    V_S = 80; V_W = 100; V_RING = 164
    RC = P.rcA; LEAD = P.leadA
    assert V_RING + 4*RC <= 256 and LEAD <= RC
    kvf = P.kvflags; wf = P.wflags
    e('s_load_dwordx8 s[4:11], s[0:1], 0')
    e('s_load_dwordx2 s[12:13], s[0:1], 32')
    e('s_load_dwordx2 s[14:15], s[0:1], 96')
    e(f'v_lshrrev_b32 v{V_T}, 6, v0')
    e(f'v_and_b32 v{V_LANE}, 63, v0')
    e(f'v_readfirstlane_b32 s3, v{V_T}')
    e('s_sub_u32 s40, s40, 4')
    e('s_mul_i32 s42, s40, 37')
    e('s_lshr_b32 s42, s42, 8')
    e('s_mul_i32 s43, s42, 7')
    e('s_sub_u32 s43, s40, s43')
    e('s_lshl_b32 s42, s42, 3')
    e('s_add_u32 s42, s42, s41')
    e('s_lshl_b32 s46, s43, 3')
    e('s_add_u32 s46, s46, s3')
    e(f's_mul_i32 s47, s46, {128*9363}')
    e(f's_add_u32 s48, s47, {128*9363}')
    e('s_lshr_b32 s47, s47, 16')
    e('s_lshr_b32 s48, s48, 16')
    e('s_sub_u32 s48, s48, s47')
    e('s_lshr_b32 s49, s47, 8')
    e('s_and_b32 s47, s47, 255')
    e('s_lshl_b32 s47, s47, 12')
    e('s_lshl_b32 s50, s49, 25')
    e('s_add_u32 s47, s47, s50')
    e('s_lshl_b32 s50, s42, 20')
    e('s_add_u32 s47, s47, s50')
    e('s_lshl_b32 s51, s48, 12')
    t = V_T
    e(f'v_lshrrev_b32 v{t}, 4, v{V_LANE}')
    e(f'v_and_b32 v{t+1}, 15, v{V_LANE}')
    e(f'v_bfe_u32 v{t+2}, v{V_LANE}, 2, 2')
    e(f'v_and_b32 v{t+3}, 3, v{V_LANE}')
    e(f'v_lshlrev_b32 v{V_KOFF}, 8, v{t+2}')
    e(f'v_lshl_add_u32 v{V_KOFF}, v{t}, 6, v{V_KOFF}')
    e(f'v_lshl_add_u32 v{V_KOFF}, v{t+3}, 4, v{V_KOFF}')
    e(f'v_lshlrev_b32 v{V_WQOFF}, 17, v{t}')
    e(f'v_lshl_add_u32 v{V_WQOFF}, v{t+1}, 4, v{V_WQOFF}')
    e(f'v_lshlrev_b32 v{t+4}, 10, v{t+2}')
    e(f'v_lshl_add_u32 v{t+4}, v{t}, 5, v{t+4}')
    e('s_lshl_b32 s52, s3, 7')
    e('s_lshl_b32 s53, s3, 19')
    e('s_lshl_b32 s54, s42, 8')
    e('s_add_u32 s53, s53, s54')
    e('s_waitcnt lgkmcnt(0)')
    make_srd(e, S_X, 4, 5, size=4096)
    make_srd(e, S_WQ, 10, 11, size=512*8192)
    make_srd(e, S_K, 6, 7, off='s47', size_sgpr='s51')
    e(f'buffer_load_dwordx4 {vr(V_XV,4)}, v{t+4}, {srd(S_X)}, s52 offen', tag='x0')
    e(f'buffer_load_dwordx4 {vr(V_XV+4,4)}, v{t+4}, {srd(S_X)}, s52 offen offset:16', tag='x1')
    e('s_mov_b32 s55, 0')
    e('s_mov_b32 s56, 0')

    def ld_wq(i):
        def f(tag):
            e(f'buffer_load_dwordx4 {vr(V_W+4*i,4)}, v{V_WQOFF}, {srd(S_WQ)}, s53 offen {wf}'.rstrip(), tag=tag)
            if i < 15: e('s_addk_i32 s53, 0x2000')
        return f
    def slot(n): return V_RING + 4*(n % RC)
    def ld_kv(n):
        isv = n >= 4*NG; k = n - 4*NG if isv else n
        def f(tag):
            so = 's56' if isv else 's55'
            e(f'buffer_load_dwordx4 {vr(slot(n),4)}, v{V_VOFF if isv else V_KOFF}, {srd(S_V if isv else S_K)}, {so} offen offset:{(k%4)*1024} {kvf}'.rstrip(), tag=tag)
            if k % 4 == 3 and k < 4*NG-1: e(f's_addk_i32 {so}, 0x1000')
        return f
    def ld_wo(i):
        def f(tag):
            e(f'buffer_load_dwordx4 {vr(V_W+4*i,4)}, v{V_WOOFF}, {srd(S_WO)}, s57 offen {wf}'.rstrip(), tag=tag)
            if i < 15: e('s_addk_i32 s57, 0x2000')
        return f
    wq = Stream(e); kv = Stream(e); wo = Stream(e)
    for i in range(16): wq.add(('wq', i), ld_wq(i))
    for n in range(8*NG): kv.add(('kv', n), ld_kv(n))
    for i in range(16): wo.add(('wo', i), ld_wo(i))

    for i in range(3):
        wq.issue(); kv.issue()
    make_srd(e, S_V, 8, 9, off='s47', size_sgpr='s51')
    make_srd(e, S_WO, 12, 13, size=4096*1024)
    make_srd(e, S_WS, 14, 15, size=WS_SIZE)
    e(f'v_lshlrev_b32 v{V_VOFF}, 4, v{V_LANE}')
    e(f'v_lshrrev_b32 v{V_WOOFF}, 3, v{V_LANE}')
    e(f'v_lshlrev_b32 v{V_WOOFF}, 10, v{V_WOOFF}')
    e(f'v_and_b32 v{t+5}, 7, v{V_LANE}')
    e(f'v_lshl_add_u32 v{V_WOOFF}, v{t+5}, 4, v{V_WOOFF}')
    e('s_lshl_b32 s57, s42, 17')
    e('s_add_u32 s57, s57, s52')
    e('s_lshr_b32 s58, s43, 1')
    e('s_sub_u32 s59, s49, s58')
    e('s_cmp_eq_u32 s48, 19')
    e('s_cselect_b32 s60, 0, 0xff800000')
    e(f's_mov_b32 s61, {CSCALE:#x}')
    lds_init(e)
    lane_consts_late(e)
    for i in range(16):
        e.wait_vm(('wq', i))
        gemv_step(e, i, V_XV + i//2, V_W + 4*i, i == 0)
        wq.issue()
        if kv.pos < RC: kv.issue()
    while kv.pos < RC: kv.issue()
    e(f'v_lshlrev_b32 v{t}, 5, v0')
    e(f'ds_write_b128 v{t}, {vr(V_D,4)} offset:{L_QP}')
    e(f'ds_write_b128 v{t}, {vr(V_D+4,4)} offset:{L_QP+16}')
    e(f'v_bfe_u32 v{t+1}, v{V_LANE}, 2, 2')
    e(f'v_lshlrev_b32 v{t+1}, 12, v{t+1}')
    e(f'v_lshrrev_b32 v{t+2}, 4, v{V_LANE}')
    e(f'v_lshl_add_u32 v{t+1}, v{t+2}, 7, v{t+1}')
    e(f'v_and_b32 v{t+2}, 3, v{V_LANE}')
    e(f'v_lshl_add_u32 v{t+1}, v{t+2}, 5, v{t+1}')
    e('s_lshl_b32 s62, s49, 9')
    e(f'v_add_u32 v{t+1}, s62, v{t+1}')
    for i in range(16): e(f'v_mov_b32 v{V_Q+i}, 0')
    for i in range(4):
        e(f'v_mov_b32 v{V_XR+2+4*i}, 0'); e(f'v_mov_b32 v{V_XR+3+4*i}, 0')
    e('s_waitcnt lgkmcnt(0)')
    e('s_barrier')
    R = V_S
    e(f'ds_read_b128 {vr(R,4)}, v{t+1} offset:{L_QP}')
    e(f'ds_read_b128 {vr(R+4,4)}, v{t+1} offset:{L_QP+16}')
    e(f'ds_read_b128 {vr(R+8,4)}, v{t+1} offset:{L_QP+2048}')
    e(f'ds_read_b128 {vr(R+12,4)}, v{t+1} offset:{L_QP+2048+16}')
    e('s_waitcnt lgkmcnt(0)')
    for i in range(8): e(f'v_add_f32 v{R+i}, v{R+i}, v{R+8+i}')
    for i in range(8): e(f'v_add_f32_dpp v{R+8+i}, v{R+i}, v{R+i} row_ror:4 {DPPALL}')
    for i in range(8): e(f'v_add_f32_dpp v{R+i}, v{R+8+i}, v{R+8+i} row_ror:8 {DPPALL}')
    for i in range(4): e(f'v_cvt_pk_bf16_f32 v{R+8+i}, v{R+2*i}, v{R+2*i+1}')
    for tt in range(4):
        for i in range(4):
            e(f'v_mov_b32_dpp v{V_Q+4*tt+i}, v{R+8+i} quad_perm:[0,1,2,3] row_mask:0xf bank_mask:{1<<tt:#x}')
    def top_up(consumed):
        while kv.pos < min(len(kv.items), consumed + 1 + LEAD): kv.issue()
    for g in range(NG):
        d = V_QK + 4*(g & 1)
        for tt in range(4):
            n = 4*g + tt
            e.wait_vm(('kv', n))
            c = '0' if tt == 0 else vr(d, 4)
            e(f'v_mfma_f32_16x16x32_bf16 {vr(d,4)}, {vr(slot(n),4)}, {vr(V_Q+4*tt,4)}, {c}')
            top_up(n)
            if tt == 1 and g > 0: diag_sum(e, V_S + g - 1, V_QK + 4*((g-1) & 1))
        if g >= P.wo_start: wo.issue()
    diag_sum(e, V_S + NG - 1, V_QK + 4*((NG-1) & 1))
    e(f'v_add_f32 v{V_S+18}, s60, v{V_S+18}')
    m = V_T
    e(f'v_max3_f32 v{m}, v{V_S}, v{V_S+1}, v{V_S+2}')
    for i in range(3, NG, 2): e(f'v_max3_f32 v{m}, v{m}, v{V_S+i}, v{V_S+i+1}')
    e(f'v_max_f32_dpp v{m}, v{m}, v{m} row_ror:4 {DPPALL}')
    e(f'v_max_f32_dpp v{m}, v{m}, v{m} row_ror:8 {DPPALL}')
    e('s_lshl_b32 s62, s59, 2')
    e(f'v_mov_b32 v{m+1}, s62')
    e(f'ds_max_f32 v{m+1}, v{m} offset:{L_M}')
    e('s_waitcnt lgkmcnt(0)')
    e('s_barrier')
    e(f'ds_read_b32 v{m}, v{m+1} offset:{L_M}')
    e('s_waitcnt lgkmcnt(0)')
    e(f'v_mul_f32 v{m}, s61, v{m}')
    for i in range(NG): e(f'v_fma_f32 v{V_S+i}, v{V_S+i}, s61, -v{m}')
    for i in range(NG): e(f'v_exp_f32 v{V_S+i}, v{V_S+i}')
    e(f'v_add_f32 v{m+2}, v{V_S}, v{V_S+1}')
    for i in range(2, NG): e(f'v_add_f32 v{m+2}, v{m+2}, v{V_S+i}')
    for i in range(NG): e(f'v_cvt_pk_bf16_f32 v{V_S+i}, v{V_S+i}, v{V_S+i}')
    e(f'v_add_f32_dpp v{m+2}, v{m+2}, v{m+2} row_ror:4 {DPPALL}')
    e(f'v_add_f32_dpp v{m+2}, v{m+2}, v{m+2} row_ror:8 {DPPALL}')
    e(f'v_mul_f32 v{m+2}, 0x3d800000, v{m+2}')
    e(f'ds_add_f32 v{m+1}, v{m+2} offset:{L_L}')
    for g in range(NG):
        for tt in range(4):
            xs = V_XR + 4*tt
            e(f'v_and_b32_dpp v{xs+2}, v{V_S+g}, v{V_B0} quad_perm:[0,1,2,3] row_mask:0xf bank_mask:{1<<tt:#x}')
            e(f'v_and_b32_dpp v{xs+3}, v{V_S+g}, v{V_B1} quad_perm:[0,1,2,3] row_mask:0xf bank_mask:{1<<tt:#x}')
        for tt in range(4):
            n = 4*NG + 4*g + tt
            xs = V_XR + 4*tt
            e.wait_vm(('kv', n))
            first = (g == 0 and tt == 0)
            e(f'v_mfma_f32_16x16x32_bf16 {vr(V_D,4)}, {vr(xs+2,4)}, {vr(slot(n),4)}, {"0" if first else vr(V_D,4)}')
            e(f'v_mfma_f32_16x16x32_bf16 {vr(V_D+4,4)}, {vr(xs,4)}, {vr(slot(n),4)}, {"0" if first else vr(V_D+4,4)}')
            top_up(n)
        wo.issue()
        if g == 2:
            e('s_lshl_b32 s62, s59, 9')
            e(f'v_lshl_add_u32 v{t+3}, v{V_LANE}, 2, s62')
            e(f'v_bfe_u32 v{t+4}, v{V_LANE}, 2, 1')
            e(f'v_lshlrev_b32 v{t+4}, 9, v{t+4}')
            e(f'v_bfe_u32 v{t+5}, v{V_LANE}, 3, 1')
            e(f'v_lshl_add_u32 v{t+4}, v{t+5}, 8, v{t+4}')
            e(f'v_lshrrev_b32 v{t+5}, 4, v{V_LANE}')
            e(f'v_lshl_add_u32 v{t+4}, v{t+5}, 6, v{t+4}')
            e('s_lshl_b32 s63, s58, 5')
            e('s_add_u32 s63, s63, s42')
            e('s_mul_i32 s63, s63, 3')
            e('s_add_u32 s64, s63, 96')
            e('s_and_b32 s65, s43, 1')
            e('s_add_u32 s63, s63, s65')
            e('s_add_u32 s63, s63, 1')
            e('s_cmp_eq_u32 s65, 1')
            e('s_cselect_b32 s64, s64, 0x10000')
            e(f'v_mov_b32 v{t+5}, s63')
            e(f'v_mov_b32 v{t+6}, s64')
            e(f'v_and_b32 v{t}, 16, v{V_LANE}')
            e(f'v_cmp_eq_u32 vcc, 0, v{t}')
            e(f'v_cndmask_b32 v{t+5}, v{t+6}, v{t+5}, vcc')
            e(f'v_lshlrev_b32 v{t+6}, 3, v{t+5}')
            e(f'v_lshlrev_b32 v{t+5}, 11, v{t+5}')
            e(f'v_and_b32 v{t}, 7, v{V_LANE}')
            e(f'v_lshl_add_u32 v{t+5}, v{t}, 5, v{t+5}')
            e(f'v_lshrrev_b32 v{t}, 5, v{V_LANE}')
            e(f'v_lshl_add_u32 v{t+5}, v{t}, 4, v{t+5}')
            e(f'v_and_b32 v{t}, 8, v{V_LANE}')
            e(f'v_lshlrev_b32 v{t}, 24, v{t}')
            e(f'v_add_u32 v{t+5}, v{t+5}, v{t}')
            e('s_lshl_b32 s62, s3, 8')
            e(f'v_and_b32 v{t}, 0x1ef, v0')
            e(f'v_cmp_eq_u32 vcc, 0, v{t}')
            e(f'v_mov_b32 v{t}, 0x8000000')
            e(f'v_cndmask_b32 v{t+6}, v{t}, v{t+6}, vcc')
            e(f'v_bfe_u32 v{t+2}, v{V_LANE}, 4, 1')
            e(f'v_lshlrev_b32 v{t+2}, 2, v{t+2}')
    while wo.pos < 16: wo.issue()
    for r in range(4): e(f'v_permlane32_swap_b32 v{V_D+r}, v{V_D+4+r}')
    for r in range(4): e(f'v_add_f32 v{V_D+r}, v{V_D+r}, v{V_D+4+r}')
    e(f'v_permlane16_swap_b32 v{V_D}, v{V_D+2}')
    e(f'v_permlane16_swap_b32 v{V_D+1}, v{V_D+3}')
    e(f'v_add_f32 v{V_D}, v{V_D}, v{V_D+2}')
    e(f'v_add_f32 v{V_D+1}, v{V_D+1}, v{V_D+3}')
    e(f'ds_add_f32 v{t+3}, v{V_D} offset:{L_ACC}')
    e(f'ds_add_f32 v{t+3}, v{V_D+1} offset:{L_ACC+256}')
    e('s_waitcnt lgkmcnt(0)')
    e('s_barrier')
    R = V_S
    for i in range(4): e(f'ds_read_b128 {vr(R+4*i,4)}, v{t+4} offset:{L_ACC+16*i}')
    e(f'ds_read_b32 v{t}, v{t+2} offset:{L_M}')
    e(f'ds_read_b32 v{t+1}, v{t+2} offset:{L_L}')
    e('s_waitcnt lgkmcnt(2)')
    for i in range(8): e(f'v_cvt_pk_bf16_f32 v{V_XV+i}, v{R+2*i}, v{R+2*i+1}')
    for i in range(16):
        e.wait_vm(('wo', i))
        gemv_step(e, i, V_XV + i//2, V_W + 4*i, i == 0)
    e('s_waitcnt lgkmcnt(0)')
    e(f'v_mul_f32 v{t}, s61, v{t}')
    e(f's_mov_b32 s63, {WS_ML}')
    e(f'buffer_store_dwordx2 {vr(t,2)}, v{t+6}, {srd(S_WS)}, s63 offen')
    fold_rg(e)
    e(f'buffer_store_dwordx4 {vr(V_D,4)}, v{t+5}, {srd(S_WS)}, s62 offen')
    e('s_endpgm')

def gen_B(e, P):
    V_S = 104; V_RING = 136
    RC = P.rcB; LEAD = P.leadB
    assert V_RING + 4*RC <= 256 and LEAD <= RC
    kvf = P.kvflags; wf = P.wflags
    t = V_T
    e('s_load_dwordx8 s[4:11], s[0:1], 40')
    e('s_load_dwordx2 s[12:13], s[0:1], 72')
    e('s_load_dwordx2 s[14:15], s[0:1], 96')
    e(f'v_lshrrev_b32 v{V_T}, 6, v0')
    e(f'v_and_b32 v{V_LANE}, 63, v0')
    e(f'v_readfirstlane_b32 s3, v{V_T}')
    e(f'v_lshrrev_b32 v{t}, 4, v{V_LANE}')
    e(f'v_bfe_u32 v{t+1}, v{V_LANE}, 3, 1')
    e(f'v_and_b32 v{t+2}, 7, v{V_LANE}')
    e(f'v_lshlrev_b32 v{V_WQOFF}, 21, v{t+1}')
    e(f'v_lshl_add_u32 v{V_WQOFF}, v{t}, 19, v{V_WQOFF}')
    e(f'v_lshl_add_u32 v{V_WQOFF}, v{t+2}, 4, v{V_WQOFF}')
    e(f'v_lshlrev_b32 v{t+4}, 9, v{t+1}')
    e(f'v_lshl_add_u32 v{t+4}, v{t}, 7, v{t+4}')
    e('s_lshl_b32 s52, s40, 10')
    e('s_lshl_b32 s53, s41, 10')
    e('s_lshl_b32 s54, s3, 7')
    e('s_add_u32 s53, s53, s54')
    e('s_waitcnt lgkmcnt(0)')
    make_srd(e, S_X, 4, 5, size=4096)
    make_srd(e, S_WQ, 10, 11, size=512*8192)
    def slot(n): return V_RING + 4*(n % RC)
    def ld(n):
        def f(tag):
            if n < 64:
                e(f'buffer_load_dwordx4 {vr(slot(n),4)}, v{V_WQOFF}, {srd(S_WQ)}, s53 offen {wf}'.rstrip(), tag=tag)
                if n < 63: e('s_addk_i32 s53, 0x2000')
            elif n < 128:
                isv = n >= 96; k = (n - 64) % 32
                so = 's56' if isv else 's55'
                e(f'buffer_load_dwordx4 {vr(slot(n),4)}, v{V_VOFF if isv else V_KOFF}, {srd(S_V if isv else S_K)}, {so} offen offset:{(k%4)*1024} {kvf}'.rstrip(), tag=tag)
                if k % 4 == 3 and k < 31: e(f's_addk_i32 {so}, 0x1000')
            else:
                e(f'buffer_load_dwordx4 {vr(slot(n),4)}, v{V_WOOFF}, {srd(S_WO)}, s57 offen {wf}'.rstrip(), tag=tag)
                if n < 191: e('s_addk_i32 s57, 0x2000')
        return f
    st = Stream(e)
    for n in range(192): st.add(n, ld(n))
    e(f'buffer_load_dwordx4 {vr(V_XV,4)}, v{t+4}, {srd(S_X)}, s52 offen', tag='x0')
    st.issue(4)
    for i in range(1, 8):
        e(f'buffer_load_dwordx4 {vr(V_XV+4*i,4)}, v{t+4}, {srd(S_X)}, s52 offen offset:{16*i}', tag=f'x{i}')
    st.issue(4)
    e('s_lshl_b32 s47, s40, 23')
    e('s_lshl_b32 s50, s41, 20')
    e('s_add_u32 s47, s47, s50')
    e('s_lshl_b32 s50, s3, 15')
    e('s_add_u32 s47, s47, s50')
    e(f's_add_u32 s47, s47, {3072*256}')
    make_srd(e, S_K, 6, 7, off='s47', size=32768)
    make_srd(e, S_V, 8, 9, off='s47', size=32768)
    make_srd(e, S_WO, 12, 13, size=4096*1024)
    make_srd(e, S_WS, 14, 15, size=WS_SIZE)
    e('s_mov_b32 s55, 0'); e('s_mov_b32 s56, 0')
    e('s_lshl_b32 s57, s41, 19')
    e('s_add_u32 s57, s57, s54')
    e(f's_mov_b32 s61, {CSCALE:#x}')
    e(f'v_lshlrev_b32 v{V_WOOFF}, 12, v{t+1}')
    e(f'v_lshl_add_u32 v{V_WOOFF}, v{t}, 10, v{V_WOOFF}')
    e(f'v_lshl_add_u32 v{V_WOOFF}, v{t+2}, 4, v{V_WOOFF}')
    e(f'v_bfe_u32 v{t+2}, v{V_LANE}, 2, 2')
    e(f'v_and_b32 v{t+3}, 3, v{V_LANE}')
    e(f'v_lshlrev_b32 v{V_KOFF}, 8, v{t+2}')
    e(f'v_lshl_add_u32 v{V_KOFF}, v{t}, 6, v{V_KOFF}')
    e(f'v_lshl_add_u32 v{V_KOFF}, v{t+3}, 4, v{V_KOFF}')
    e(f'v_lshlrev_b32 v{V_VOFF}, 4, v{V_LANE}')
    lds_init(e)
    lane_consts_late(e)
    def top_up(consumed, lead=LEAD):
        while st.pos < min(len(st.items), consumed + 1 + lead): st.issue()
    e.wait_vm('x7')
    for n in range(64):
        e.wait_vm(n)
        gemv_step(e, n, V_XV + n//2, slot(n), n == 0)
        top_up(n)
    top_up(63, RC)
    fold_rg(e)
    e(f'v_cvt_pk_bf16_f32 v{V_D}, v{V_D}, v{V_D+1}')
    e(f'v_cvt_pk_bf16_f32 v{V_D+1}, v{V_D+2}, v{V_D+3}')
    e(f'v_and_b32 v{t}, 7, v{V_LANE}')
    e(f'v_lshlrev_b32 v{t}, 4, v{t}')
    e(f'v_lshrrev_b32 v{t+1}, 5, v{V_LANE}')
    e(f'v_lshl_add_u32 v{t}, v{t+1}, 3, v{t}')
    e(f'v_and_b32 v{t+1}, 8, v{V_LANE}')
    e(f'v_lshl_add_u32 v{t}, v{t+1}, 7, v{t}')
    e(f'v_add_u32 v{t}, s54, v{t}')
    e(f'ds_write_b64 v{t}, {vr(V_D,2)} offset:{L_QP}')
    e('s_waitcnt lgkmcnt(0)')
    e('s_barrier')
    e(f'ds_read_b128 {vr(V_Q,4)}, v{V_KOFF} offset:{L_QP}')
    e('s_waitcnt lgkmcnt(0)')
    for k in range(32):
        n = 64 + k
        d = V_QK + 4*(k & 1)
        e.wait_vm(n)
        e(f'v_mfma_f32_16x16x32_bf16 {vr(d,4)}, {vr(slot(n),4)}, {vr(V_Q,4)}, 0')
        top_up(n)
        if k > 0: diag_sum(e, V_S + k - 1, V_QK + 4*((k-1) & 1))
    top_up(95, RC)
    diag_sum(e, V_S + 31, V_QK + 4)
    m = V_T
    e(f'v_max3_f32 v{m}, v{V_S}, v{V_S+1}, v{V_S+2}')
    for i in range(3, 31, 2): e(f'v_max3_f32 v{m}, v{m}, v{V_S+i}, v{V_S+i+1}')
    e(f'v_max_f32 v{m}, v{m}, v{V_S+31}')
    e(f'v_and_b32 v{m+1}, 12, v{V_LANE}')
    e(f'ds_max_f32 v{m+1}, v{m} offset:{L_M}')
    e('s_waitcnt lgkmcnt(0)')
    e('s_barrier')
    e(f'ds_read_b32 v{m}, v{m+1} offset:{L_M}')
    e('s_waitcnt lgkmcnt(0)')
    e(f'v_mul_f32 v{m}, s61, v{m}')
    for i in range(32): e(f'v_fma_f32 v{V_S+i}, v{V_S+i}, s61, -v{m}')
    for i in range(32): e(f'v_exp_f32 v{V_S+i}, v{V_S+i}')
    e(f'v_add_f32 v{m+2}, v{V_S}, v{V_S+1}')
    for i in range(2, 32): e(f'v_add_f32 v{m+2}, v{m+2}, v{V_S+i}')
    for i in range(32): e(f'v_cvt_pk_bf16_f32 v{V_S+i}, v{V_S+i}, v{V_S+i}')
    e(f'v_mul_f32 v{m+2}, 0x3e800000, v{m+2}')
    e(f'ds_add_f32 v{m+1}, v{m+2} offset:{L_L}')
    for k in range(32):
        n = 96 + k
        xs = V_XR + 4*(k & 3)
        e(f'v_and_b32 v{xs+2}, v{V_S+k}, v{V_B0}')
        e(f'v_and_b32 v{xs+3}, v{V_S+k}, v{V_B1}')
        e.wait_vm(n)
        e(f'v_mfma_f32_16x16x32_bf16 {vr(V_D,4)}, {vr(xs+2,4)}, {vr(slot(n),4)}, {"0" if k==0 else vr(V_D,4)}')
        e(f'v_mfma_f32_16x16x32_bf16 {vr(V_D+4,4)}, {vr(xs,4)}, {vr(slot(n),4)}, {"0" if k==0 else vr(V_D+4,4)}')
        top_up(n)
    top_up(127, RC)
    e(f'v_lshlrev_b32 v{t}, 2, v{V_LANE}')
    for r in range(8): e(f'ds_add_f32 v{t}, v{V_D+r} offset:{L_ACC+256*r}')
    e(f'v_bfe_u32 v{t+1}, v{V_LANE}, 3, 1')
    e(f'v_lshlrev_b32 v{t+1}, 10, v{t+1}')
    e(f'v_lshrrev_b32 v{t+2}, 4, v{V_LANE}')
    e(f'v_lshl_add_u32 v{t+1}, v{t+2}, 8, v{t+1}')
    e(f'v_mov_b32 v{t+2}, 0')
    e('s_waitcnt lgkmcnt(0)')
    e('s_barrier')
    e(f'ds_read_b128 {vr(V_QK,4)}, v{t+2} offset:{L_L}')
    R = V_S
    for half in range(2):
        for i in range(8): e(f'ds_read_b128 {vr(R+4*i,4)}, v{t+1} offset:{L_ACC+128*half+16*i}')
        e('s_waitcnt lgkmcnt(0)')
        if half == 0:
            for i in range(4): e(f'v_rcp_f32 v{V_QK+i}, v{V_QK+i}')
        for i in range(32): e(f'v_mul_f32 v{R+i}, v{R+i}, v{V_QK + 2*half + i//16}')
        for i in range(16): e(f'v_cvt_pk_bf16_f32 v{V_XV+16*half+i}, v{R+2*i}, v{R+2*i+1}')
    e(f'v_and_b32 v{t}, 7, v{V_LANE}')
    e(f'v_lshlrev_b32 v{t+5}, 5, v{t}')
    e(f'v_lshrrev_b32 v{t}, 5, v{V_LANE}')
    e(f'v_lshl_add_u32 v{t+5}, v{t}, 4, v{t+5}')
    e(f'v_and_b32 v{t}, 24, v{V_LANE}')
    e(f'v_lshlrev_b32 v{t}, 24, v{t}')
    e(f'v_add_u32 v{t+5}, v{t+5}, v{t}')
    e('s_lshl_b32 s62, s40, 3')
    e('s_add_u32 s62, s62, s41')
    e('s_lshl_b32 s62, s62, 11')
    e('s_lshl_b32 s63, s3, 8')
    e('s_add_u32 s62, s62, s63')
    e(f's_add_u32 s62, s62, {WS_YB}')
    for k in range(64):
        n = 128 + k
        e.wait_vm(n)
        gemv_step(e, k, V_XV + k//2, slot(n), k == 0)
        top_up(n)
    fold_rg(e)
    e(f'buffer_store_dwordx4 {vr(V_D,4)}, v{t+5}, {srd(S_WS)}, s62 offen')
    e('s_endpgm')

def gen_reduce(e):
    e('s_cmp_ge_u32 s2, 32')
    e('s_cbranch_scc1 L_red_end')
    e('s_load_dwordx2 s[4:5], s[0:1], 80')
    e('s_load_dwordx2 s[6:7], s[0:1], 96')
    e('s_lshr_b32 s20, s2, 3')
    e('s_and_b32 s21, s2, 7')
    e('v_lshrrev_b32 v1, 4, v0')
    e('v_and_b32 v2, 15, v0')
    e('v_mul_u32_u24 v3, 48, v1')
    e('v_mul_u32_u24 v4, 12288, v1')
    e('v_lshl_add_u32 v4, v2, 4, v4')
    e('v_lshlrev_b32 v5, 11, v1')
    e('v_lshl_add_u32 v5, v2, 4, v5')
    e('v_and_b32 v6, 0x80, v0')
    e('v_lshlrev_b32 v6, 20, v6')
    e('v_add_u32 v5, v5, v6')
    e('s_mul_i32 s22, s20, 768')
    e(f's_add_u32 s22, s22, {WS_ML}')
    e(f's_mul_i32 s23, s20, {96*2048}')
    e('s_lshl_b32 s24, s21, 8')
    e('s_add_u32 s23, s23, s24')
    e('s_lshl_b32 s25, s20, 14')
    e('s_add_u32 s25, s25, s24')
    e(f's_add_u32 s25, s25, {WS_YB}')
    e('s_add_u32 s26, s23, 4096')
    e('s_add_u32 s27, s23, 8192')
    e('s_waitcnt lgkmcnt(0)')
    make_srd(e, 8, 6, 7, size=WS_SIZE)
    make_srd(e, 12, 4, 5, size=8192)
    for i in range(3): e(f'buffer_load_dwordx4 {vr(8+4*i,4)}, v3, s[8:11], s22 offen offset:{16*i}', tag=('ml', i))
    for j in range(6):
        e(f'buffer_load_dwordx4 {vr(20+4*j,4)}, v4, s[8:11], s{[23,26,27][j//2]} offen offset:{2048*(j%2)}', tag=('y', j))
    e(f'buffer_load_dwordx4 {vr(44,4)}, v5, s[8:11], s25 offen', tag='yb')
    e('s_cmp_eq_u32 s20, 0')
    e('s_cselect_b64 s[28:29], -1, 0')
    e('s_cmp_eq_u32 s20, 3')
    e('s_cselect_b64 s[30:31], -1, 0')
    e('v_mov_b32 v6, 0xff800000')
    e('v_mov_b32 v7, 0')
    e('v_lshlrev_b32 v52, 2, v0')
    e('ds_write_b32 v52, v7')
    e.wait_vm(('ml', 2))
    for hh in range(2):
        for j, mk in ((0, 's[28:29]'), (2, 's[30:31]')):
            e(f'v_cndmask_b32 v{8+6*hh+2*j}, v{8+6*hh+2*j}, v6, {mk}')
            e(f'v_cndmask_b32 v{9+6*hh+2*j}, v{9+6*hh+2*j}, v7, {mk}')
    for hh in range(2):
        b = 8 + 6*hh
        e(f'v_max3_f32 v48, v{b}, v{b+2}, v{b+4}')
        for j in range(3): e(f'v_sub_f32 v{b+2*j}, v{b+2*j}, v48')
        for j in range(3): e(f'v_exp_f32 v{b+2*j}, v{b+2*j}')
        e(f'v_mul_f32 v49, v{b}, v{b+1}')
        e(f'v_fmac_f32 v49, v{b+2}, v{b+3}')
        e(f'v_fmac_f32 v49, v{b+4}, v{b+5}')
        e('v_rcp_f32 v49, v49')
        for j in range(3): e(f'v_mul_f32 v{b+2*j}, v{b+2*j}, v49')
    e.wait_vm('yb')
    for hh in range(2):
        for j, mk in ((0, 's[28:29]'), (2, 's[30:31]')):
            for r in range(4):
                y = 20 + 4*(3*hh+j) + r
                e(f'v_cndmask_b32 v{y}, v{y}, v7, {mk}')
    for r in range(4): e(f'v_mul_f32 v{48+r}, v{20+r}, v8')
    for j in range(1, 6):
        for r in range(4): e(f'v_fmac_f32 v{48+r}, v{20+4*j+r}, v{8+2*j}')
    for r in range(4): e(f'v_permlane32_swap_b32 v{48+r}, v{44+r}')
    for r in range(4): e(f'v_add_f32 v{48+r}, v{48+r}, v{44+r}')
    e('v_permlane16_swap_b32 v48, v50')
    e('v_permlane16_swap_b32 v49, v51')
    e('v_add_f32 v48, v48, v50')
    e('v_add_f32 v49, v49, v51')
    e('v_and_b32 v52, 63, v0')
    e('v_lshlrev_b32 v53, 2, v52')
    e('s_waitcnt lgkmcnt(0)')
    e('s_barrier')
    e('ds_add_f32 v53, v48')
    e('ds_add_f32 v53, v49 offset:256')
    e('v_lshrrev_b32 v54, 5, v52')
    e('v_lshlrev_b32 v54, 10, v54')
    e('v_lshl_add_u32 v54, v2, 3, v54')
    e('v_bfe_u32 v55, v52, 4, 1')
    e('v_lshl_add_u32 v54, v55, 2, v54')
    e('v_and_b32 v55, 0xc0, v0')
    e('v_lshlrev_b32 v55, 20, v55')
    e('v_add_u32 v54, v54, v55')
    e('s_lshl_b32 s22, s20, 11')
    e('s_lshl_b32 s23, s21, 7')
    e('s_add_u32 s22, s22, s23')
    e('s_waitcnt lgkmcnt(0)')
    e('s_barrier')
    e('ds_read_b32 v48, v53')
    e('ds_read_b32 v49, v53 offset:256')
    e('s_waitcnt lgkmcnt(0)')
    e('v_cvt_pk_bf16_f32 v48, v48, v49')
    e('buffer_store_dword v48, v54, s[12:15], s22 offen')
    e.label('L_red_end')
    e('s_endpgm')

def kd(name, nv, ns):
    return f""".p2align 6
.amdhsa_kernel {name}
  .amdhsa_next_free_vgpr {nv}
  .amdhsa_next_free_sgpr {ns}
  .amdhsa_accum_offset {(nv+3)//4*4}
  .amdhsa_group_segment_fixed_size 0
  .amdhsa_kernarg_size 104
  .amdhsa_user_sgpr_count 2
  .amdhsa_user_sgpr_kernarg_segment_ptr 1
  .amdhsa_system_sgpr_workgroup_id_x 1
.end_amdhsa_kernel
"""

def main():
    ap = argparse.ArgumentParser()
    ap.add_argument('-o', default=f'cdna_kernels/{NAME}.s')
    ap.add_argument('--rcA', type=int, default=22)
    ap.add_argument('--leadA', type=int, default=12)
    ap.add_argument('--rcB', type=int, default=28)
    ap.add_argument('--leadB', type=int, default=12)
    ap.add_argument('--wo_start', type=int, default=3)
    ap.add_argument('--kvflags', default='nt')
    ap.add_argument('--wflags', default='')
    P = ap.parse_args()
    for W in range(57):
        assert (W*128*9363) >> 16 == W*128//7
    hdr = open(f'cdna_kernels/{NAME}.s.ref').read().split('; Override launch')[0]
    out = [hdr.rstrip('\n')]
    out.append(f'; @launch kernel={NAME}_kernel grid=(256,1,1) block=(512,1,1) lds={LDS_BYTES}')
    out.append(f'; @launch kernel=reduce_kernel grid=(32,1,1) block=(256,1,1) lds=1024')
    out.append('.amdgcn_target "amdgcn-amd-amdhsa--gfx950"\n.text')
    out.append(f'.globl {NAME}_kernel\n.p2align 8\n.type {NAME}_kernel,@function\n{NAME}_kernel:')
    e = Emitter()
    e('s_cmp_ge_u32 s2, 256')
    e('s_cbranch_scc1 L_exit')
    e('s_lshr_b32 s40, s2, 3')
    e('s_and_b32 s41, s2, 7')
    e('s_cmp_lt_u32 s40, 4')
    e('s_cbranch_scc1 L_pathB')
    gen_A(e, P)
    e.label('L_exit')
    e('s_endpgm')
    out.append(e.text())
    nA = e.nins
    e = Emitter()
    e.raw('.p2align 6')
    e.label('L_pathB')
    gen_B(e, P)
    out.append(e.text())
    nB = e.nins
    out.append('.globl reduce_kernel\n.p2align 8\n.type reduce_kernel,@function\nreduce_kernel:')
    e = Emitter(); gen_reduce(e); out.append(e.text())
    out.append('.section .rodata,"a"')
    out.append(kd(f'{NAME}_kernel', 256, 72))
    out.append(kd('reduce_kernel', 56, 40))
    open(P.o, 'w').write('\n'.join(out))
    print('instructions: A', nA, 'B', nB, 'R', e.nins, file=sys.stderr)

main()
```

```python
import sys, math, struct, argparse
from asmlib import Emitter

NAME = 'concat_heads__mha_block_cached__sliding_block_cached__decode'
def f2u(x): return struct.unpack('<I', struct.pack('<f', x))[0]
CSCALE = f2u(math.log2(math.e) / math.sqrt(128.0))

WS_YA = 0
WS_ML = 4*32*3*4096
WS_EP = WS_ML + 0x2000
WS_YB = WS_ML + 0x4000
WS_SIZE = 2 << 20
TAG_MUL = 0x9E3779B1
TAG_ADD = 0x7F4A7C15
SPIN_CAP = 400000
L_QP = 0
L_ACC = 16384
L_M = L_ACC + 2048
L_L = L_M + 16
LDS_BYTES = L_L + 16

S_X, S_K, S_V, S_WQ, S_WO, S_WS = 16, 20, 24, 28, 32, 36
def srd(n): return f's[{n}:{n+3}]'

V_LANE = 1; V_KOFF = 2; V_VOFF = 3; V_WQOFF = 4; V_WOOFF = 5
V_B0 = 6; V_B1 = 7; V_SEL = 8
V_T = 12
V_XR = 20
V_Q = 40
V_D = 56
V_QK = 64
V_XV = 72

def vr(a, n): return f'v[{a}:{a+n-1}]'
DPPALL = 'row_mask:0xf bank_mask:0xf'

def make_srd(e, s, lo, hi, off=None, size=None, size_sgpr=None):
    if off is None:
        e(f's_mov_b32 s{s}, s{lo}')
        e(f's_and_b32 s{s+1}, s{hi}, 0xffff')
    else:
        e(f's_add_u32 s{s}, s{lo}, {off}')
        e(f's_addc_u32 s{s+1}, s{hi}, 0')
        e(f's_and_b32 s{s+1}, s{s+1}, 0xffff')
    if size_sgpr is not None: e(f's_mov_b32 s{s+2}, {size_sgpr}')
    else: e(f's_mov_b32 s{s+2}, {size:#x}')
    e(f's_mov_b32 s{s+3}, 0x00020000')

def lane_consts_late(e):
    t = V_T
    e(f'v_and_b32 v{t}, 3, v{V_LANE}')
    e(f'v_lshlrev_b32 v{t}, 4, v{t}')
    e(f'v_mov_b32 v{t+2}, 0xffff')
    e(f'v_mov_b32 v{t+3}, 0')
    e(f'v_lshlrev_b64 v[{V_B0}:{V_B1}], v{t}, v[{t+2}:{t+3}]')
    e(f'v_mov_b32 v{t+1}, 0x0c0c0c0c')
    e(f's_mov_b32 s44, 0x01000100')
    e(f's_mov_b32 s45, 0x03020302')
    e(f'v_bfi_b32 v{V_SEL+0}, v{V_B0}, s44, v{t+1}')
    e(f'v_bfi_b32 v{V_SEL+1}, v{V_B1}, s44, v{t+1}')
    e(f'v_bfi_b32 v{V_SEL+2}, v{V_B0}, s45, v{t+1}')
    e(f'v_bfi_b32 v{V_SEL+3}, v{V_B1}, s45, v{t+1}')
    for i in range(5):
        e(f'v_mov_b32 v{V_XR+4*i}, 0')
        e(f'v_mov_b32 v{V_XR+4*i+1}, 0')

def lds_init(e):
    t = V_T
    e(f'v_lshlrev_b32 v{t}, 2, v0')
    e(f'v_mov_b32 v{t+1}, 0')
    e(f'ds_write_b32 v{t}, v{t+1} offset:{L_ACC}')
    e(f'v_and_b32 v{t}, 12, v{t}')
    e(f'v_mov_b32 v{t+2}, 0xff800000')
    e(f'ds_write_b32 v{t}, v{t+2} offset:{L_M}')
    e(f'ds_write_b32 v{t}, v{t+1} offset:{L_L}')

def gemv_step(e, t, src_reg, wreg, first):
    xs = V_XR + 4*(t & 3)
    par = t & 1
    e(f'v_perm_b32 v{xs+2}, v{src_reg}, v{src_reg}, v{V_SEL+2*par}')
    e(f'v_perm_b32 v{xs+3}, v{src_reg}, v{src_reg}, v{V_SEL+2*par+1}')
    c0 = '0' if first else vr(V_D, 4)
    c1 = '0' if first else vr(V_D+4, 4)
    e(f'v_mfma_f32_16x16x32_bf16 {vr(V_D,4)}, {vr(xs+2,4)}, {vr(wreg,4)}, {c0}')
    e(f'v_mfma_f32_16x16x32_bf16 {vr(V_D+4,4)}, {vr(xs,4)}, {vr(wreg,4)}, {c1}')

def diag_sum(e, dst, d):
    e(f'v_mov_b32_dpp v{dst}, v{d} quad_perm:[0,0,0,0] {DPPALL}')
    e(f'v_mov_b32_dpp v{V_T+7}, v{d+2} quad_perm:[2,2,2,2] {DPPALL}')
    e(f'v_add_f32_dpp v{dst}, v{d+1}, v{dst} quad_perm:[1,1,1,1] {DPPALL}')
    e(f'v_add_f32_dpp v{V_T+7}, v{d+3}, v{V_T+7} quad_perm:[3,3,3,3] {DPPALL}')
    e(f'v_add_f32 v{dst}, v{dst}, v{V_T+7}')

def fold_rg(e):
    for r in range(4):
        e(f'v_permlane32_swap_b32 v{V_D+r}, v{V_D+4+r}')
    for r in range(4):
        e(f'v_add_f32_dpp v{V_D+r}, v{V_D+4+r}, v{V_D+r} row_ror:8 {DPPALL}')

def fold_pub(e, dst):
    for r in range(4):
        e(f'v_permlane32_swap_b32 v{V_D+r}, v{V_D+4+r}')
    e(f'v_add_f32_dpp v{dst}, v{V_D+4}, v{V_D} row_ror:8 row_mask:0xf bank_mask:0x3')
    e(f'v_add_f32_dpp v{dst+2}, v{V_D+5}, v{V_D+1} row_ror:8 row_mask:0xf bank_mask:0x3')
    e(f'v_add_f32_dpp v{dst}, v{V_D+2}, v{V_D+6} row_ror:8 row_mask:0xf bank_mask:0xc')
    e(f'v_add_f32_dpp v{dst+2}, v{V_D+3}, v{V_D+7} row_ror:8 row_mask:0xf bank_mask:0xc')

def pub_lane_off(e, dst, tmp):
    e(f'v_and_b32 v{tmp}, 7, v{V_LANE}')
    e(f'v_lshlrev_b32 v{dst}, 6, v{tmp}')
    e(f'v_and_b32 v{tmp}, 32, v{V_LANE}')
    e(f'v_add_u32 v{dst}, v{dst}, v{tmp}')
    e(f'v_and_b32 v{tmp}, 8, v{V_LANE}')
    e(f'v_lshl_add_u32 v{dst}, v{tmp}, 1, v{dst}')

STAMPS = False
def stamp(e, k):
    if not STAMPS: return
    e(f's_memrealtime s[{70+2*k}:{71+2*k}]')
    e('s_waitcnt lgkmcnt(0)')
SPIN = 0
_spin_id = [0]
def stamp_store(e):
    if SPIN:
        _spin_id[0] += 1
        e('s_waitcnt vmcnt(0)')
        e.label(f'L_spin{_spin_id[0]}')
        e('s_memrealtime s[72:73]')
        e('s_waitcnt lgkmcnt(0)')
        e('s_sub_u32 s72, s72, s70')
        e(f's_cmp_lt_u32 s72, {SPIN}')
        e(f's_cbranch_scc1 L_spin{_spin_id[0]}')
    if not STAMPS: return
    e('s_waitcnt vmcnt(0)')
    stamp(e, 6)
    e('s_getreg_b32 s84, hwreg(HW_REG_XCC_ID)')
    make_srd(e, 88, 14, 15, size=4<<20)
    e('s_lshl_b32 s85, s2, 3')
    e('s_add_u32 s85, s85, s3')
    e('s_lshl_b32 s85, s85, 5')
    e(f's_add_u32 s85, s85, {2<<20}')
    for k in range(7): e(f'v_mov_b32 v{100+k}, s{70+2*k}')
    e('v_mov_b32 v107, s84')
    e(f'v_lshlrev_b32 v108, 24, v{V_LANE}')
    e('buffer_store_dwordx4 v[100:103], v108, s[88:91], s85 offen')
    e('buffer_store_dwordx4 v[104:107], v108, s[88:91], s85 offen offset:16')

class Stream:
    def __init__(self, e):
        self.e = e; self.items = []; self.pos = 0
    def add(self, tag, fn): self.items.append((tag, fn))
    def issue(self, n=1):
        for _ in range(n):
            if self.pos >= len(self.items): return
            tag, fn = self.items[self.pos]; fn(tag); self.pos += 1
    def issue_until(self, tag):
        idx = [t for t, _ in self.items].index(tag)
        while self.pos <= idx: self.issue()
    def issued(self, tag):
        return [t for t, _ in self.items].index(tag) < self.pos

def gen_A(e, P):
    NG = 19
    V_S = 80; V_W = 100; V_RING = 164
    RC = P.rcA; LEAD = P.leadA
    assert V_RING + 4*RC <= 256 and LEAD <= RC
    kvf = P.kvflags; wf = P.wflags
    if STAMPS or SPIN: e('s_memrealtime s[70:71]')
    e('s_load_dwordx8 s[4:11], s[0:1], 0')
    e('s_load_dwordx2 s[12:13], s[0:1], 32')
    e('s_load_dwordx2 s[14:15], s[0:1], 96')
    e(f'v_lshrrev_b32 v{V_T}, 6, v0')
    e(f'v_and_b32 v{V_LANE}, 63, v0')
    e(f'v_readfirstlane_b32 s3, v{V_T}')
    e('s_sub_u32 s40, s40, 4')
    e('s_mul_i32 s42, s40, 37')
    e('s_lshr_b32 s42, s42, 8')
    e('s_mul_i32 s43, s42, 7')
    e('s_sub_u32 s43, s40, s43')
    e('s_lshl_b32 s42, s42, 3')
    e('s_add_u32 s42, s42, s41')
    e('s_lshl_b32 s46, s43, 3')
    e('s_add_u32 s46, s46, s3')
    e(f's_mul_i32 s47, s46, {128*9363}')
    e(f's_add_u32 s48, s47, {128*9363}')
    e('s_lshr_b32 s47, s47, 16')
    e('s_lshr_b32 s48, s48, 16')
    e('s_sub_u32 s48, s48, s47')
    e('s_lshr_b32 s49, s47, 8')
    e('s_and_b32 s47, s47, 255')
    e('s_lshl_b32 s47, s47, 12')
    e('s_lshl_b32 s50, s49, 25')
    e('s_add_u32 s47, s47, s50')
    e('s_lshl_b32 s50, s42, 20')
    e('s_add_u32 s47, s47, s50')
    e('s_lshl_b32 s51, s48, 12')
    t = V_T
    e(f'v_lshrrev_b32 v{t}, 4, v{V_LANE}')
    e(f'v_and_b32 v{t+1}, 15, v{V_LANE}')
    e(f'v_bfe_u32 v{t+2}, v{V_LANE}, 2, 2')
    e(f'v_and_b32 v{t+3}, 3, v{V_LANE}')
    e(f'v_lshlrev_b32 v{V_KOFF}, 8, v{t+2}')
    e(f'v_lshl_add_u32 v{V_KOFF}, v{t}, 6, v{V_KOFF}')
    e(f'v_lshl_add_u32 v{V_KOFF}, v{t+3}, 4, v{V_KOFF}')
    e(f'v_lshlrev_b32 v{V_WQOFF}, 17, v{t}')
    e(f'v_lshl_add_u32 v{V_WQOFF}, v{t+1}, 4, v{V_WQOFF}')
    e(f'v_lshlrev_b32 v{t+4}, 10, v{t+2}')
    e(f'v_lshl_add_u32 v{t+4}, v{t}, 5, v{t+4}')
    e('s_lshl_b32 s52, s3, 7')
    e('s_lshl_b32 s53, s3, 19')
    e('s_lshl_b32 s54, s42, 8')
    e('s_add_u32 s53, s53, s54')
    e('s_waitcnt lgkmcnt(0)')
    make_srd(e, S_X, 4, 5, size=4096)
    make_srd(e, S_WQ, 10, 11, size=512*8192)
    make_srd(e, S_K, 6, 7, off='s47', size_sgpr='s51')
    e(f'buffer_load_dwordx4 {vr(V_XV,4)}, v{t+4}, {srd(S_X)}, s52 offen', tag='x0')
    e(f'buffer_load_dwordx4 {vr(V_XV+4,4)}, v{t+4}, {srd(S_X)}, s52 offen offset:16', tag='x1')
    e('s_mov_b32 s55, 0')
    e('s_mov_b32 s56, 0')

    def ld_wq(i):
        def f(tag):
            e(f'buffer_load_dwordx4 {vr(V_W+4*i,4)}, v{V_WQOFF}, {srd(S_WQ)}, s53 offen {wf}'.rstrip(), tag=tag)
            if i < 15: e('s_addk_i32 s53, 0x2000')
        return f
    def slot(n): return V_RING + 4*(n % RC)
    def ld_kv(n):
        isv = n >= 4*NG; k = n - 4*NG if isv else n
        def f(tag):
            so = 's56' if isv else 's55'
            e(f'buffer_load_dwordx4 {vr(slot(n),4)}, v{V_VOFF if isv else V_KOFF}, {srd(S_V if isv else S_K)}, {so} offen offset:{(k%4)*1024} {kvf}'.rstrip(), tag=tag)
            if k % 4 == 3 and k < 4*NG-1: e(f's_addk_i32 {so}, 0x1000')
        return f
    def ld_wo(i):
        def f(tag):
            e(f'buffer_load_dwordx4 {vr(V_W+4*i,4)}, v{V_WOOFF}, {srd(S_WO)}, s57 offen {wf}'.rstrip(), tag=tag)
            if i < 15: e('s_addk_i32 s57, 0x2000')
        return f
    wq = Stream(e); kv = Stream(e); wo = Stream(e)
    for i in range(16): wq.add(('wq', i), ld_wq(i))
    for n in range(8*NG): kv.add(('kv', n), ld_kv(n))
    for i in range(16): wo.add(('wo', i), ld_wo(i))

    for i in range(3):
        wq.issue(); kv.issue()
    make_srd(e, S_V, 8, 9, off='s47', size_sgpr='s51')
    make_srd(e, S_WO, 12, 13, size=4096*1024)
    make_srd(e, S_WS, 14, 15, size=WS_SIZE)
    e(f'v_lshlrev_b32 v{V_VOFF}, 4, v{V_LANE}')
    e(f'v_lshrrev_b32 v{V_WOOFF}, 3, v{V_LANE}')
    e(f'v_lshlrev_b32 v{V_WOOFF}, 10, v{V_WOOFF}')
    e(f'v_and_b32 v{t+5}, 7, v{V_LANE}')
    e(f'v_lshl_add_u32 v{V_WOOFF}, v{t+5}, 4, v{V_WOOFF}')
    e('s_lshl_b32 s57, s42, 17')
    e('s_add_u32 s57, s57, s52')
    e('s_lshr_b32 s58, s43, 1')
    e('s_lshl_b32 s66, s58, 2')
    e(f's_add_u32 s66, s66, {WS_EP}')
    e('s_load_dword s67, s[14:15], s66')
    e('s_add_u32 s66, s66, 4')
    e('s_load_dword s68, s[14:15], s66')
    e('s_sub_u32 s59, s49, s58')
    e('s_cmp_eq_u32 s48, 19')
    e('s_cselect_b32 s60, 0, 0xff800000')
    e(f's_mov_b32 s61, {CSCALE:#x}')
    lds_init(e)
    lane_consts_late(e)
    for i in range(16):
        e.wait_vm(('wq', i))
        gemv_step(e, i, V_XV + i//2, V_W + 4*i, i == 0)
        wq.issue()
        if kv.pos < RC: kv.issue()
    while kv.pos < RC: kv.issue()
    e(f'v_lshlrev_b32 v{t}, 5, v0')
    e(f'ds_write_b128 v{t}, {vr(V_D,4)} offset:{L_QP}')
    e(f'ds_write_b128 v{t}, {vr(V_D+4,4)} offset:{L_QP+16}')
    e(f'v_bfe_u32 v{t+1}, v{V_LANE}, 2, 2')
    e(f'v_lshlrev_b32 v{t+1}, 12, v{t+1}')
    e(f'v_lshrrev_b32 v{t+2}, 4, v{V_LANE}')
    e(f'v_lshl_add_u32 v{t+1}, v{t+2}, 7, v{t+1}')
    e(f'v_and_b32 v{t+2}, 3, v{V_LANE}')
    e(f'v_lshl_add_u32 v{t+1}, v{t+2}, 5, v{t+1}')
    e('s_lshl_b32 s62, s49, 9')
    e(f'v_add_u32 v{t+1}, s62, v{t+1}')
    for i in range(16): e(f'v_mov_b32 v{V_Q+i}, 0')
    for i in range(4):
        e(f'v_mov_b32 v{V_XR+2+4*i}, 0'); e(f'v_mov_b32 v{V_XR+3+4*i}, 0')
    e('s_waitcnt lgkmcnt(0)')
    stamp(e, 1)
    e('s_barrier')
    R = V_S
    e(f'ds_read_b128 {vr(R,4)}, v{t+1} offset:{L_QP}')
    e(f'ds_read_b128 {vr(R+4,4)}, v{t+1} offset:{L_QP+16}')
    e(f'ds_read_b128 {vr(R+8,4)}, v{t+1} offset:{L_QP+2048}')
    e(f'ds_read_b128 {vr(R+12,4)}, v{t+1} offset:{L_QP+2048+16}')
    e('s_waitcnt lgkmcnt(0)')
    for i in range(8): e(f'v_add_f32 v{R+i}, v{R+i}, v{R+8+i}')
    for i in range(8): e(f'v_add_f32_dpp v{R+8+i}, v{R+i}, v{R+i} row_ror:4 {DPPALL}')
    for i in range(8): e(f'v_add_f32_dpp v{R+i}, v{R+8+i}, v{R+8+i} row_ror:8 {DPPALL}')
    for i in range(4): e(f'v_cvt_pk_bf16_f32 v{R+8+i}, v{R+2*i}, v{R+2*i+1}')
    for tt in range(4):
        for i in range(4):
            e(f'v_mov_b32_dpp v{V_Q+4*tt+i}, v{R+8+i} quad_perm:[0,1,2,3] row_mask:0xf bank_mask:{1<<tt:#x}')
    def top_up(consumed):
        while kv.pos < min(len(kv.items), consumed + 1 + LEAD): kv.issue()
    for g in range(NG):
        d = V_QK + 4*(g & 1)
        for tt in range(4):
            n = 4*g + tt
            e.wait_vm(('kv', n))
            c = '0' if tt == 0 else vr(d, 4)
            e(f'v_mfma_f32_16x16x32_bf16 {vr(d,4)}, {vr(slot(n),4)}, {vr(V_Q+4*tt,4)}, {c}')
            top_up(n)
            if tt == 1 and g > 0: diag_sum(e, V_S + g - 1, V_QK + 4*((g-1) & 1))
        if g >= P.wo_start: wo.issue()
    diag_sum(e, V_S + NG - 1, V_QK + 4*((NG-1) & 1))
    e(f'v_add_f32 v{V_S+18}, s60, v{V_S+18}')
    m = V_T
    e(f'v_max3_f32 v{m}, v{V_S}, v{V_S+1}, v{V_S+2}')
    for i in range(3, NG, 2): e(f'v_max3_f32 v{m}, v{m}, v{V_S+i}, v{V_S+i+1}')
    e(f'v_max_f32_dpp v{m}, v{m}, v{m} row_ror:4 {DPPALL}')
    e(f'v_max_f32_dpp v{m}, v{m}, v{m} row_ror:8 {DPPALL}')
    e('s_lshl_b32 s62, s59, 2')
    e(f'v_mov_b32 v{m+1}, s62')
    e(f'ds_max_f32 v{m+1}, v{m} offset:{L_M}')
    e('s_waitcnt lgkmcnt(0)')
    stamp(e, 2)
    e('s_barrier')
    stamp(e, 3)
    e(f'ds_read_b32 v{m}, v{m+1} offset:{L_M}')
    e('s_waitcnt lgkmcnt(0)')
    e(f'v_mul_f32 v{m}, s61, v{m}')
    for i in range(NG): e(f'v_fma_f32 v{V_S+i}, v{V_S+i}, s61, -v{m}')
    for i in range(NG): e(f'v_exp_f32 v{V_S+i}, v{V_S+i}')
    e(f'v_add_f32 v{m+2}, v{V_S}, v{V_S+1}')
    for i in range(2, NG): e(f'v_add_f32 v{m+2}, v{m+2}, v{V_S+i}')
    for i in range(NG): e(f'v_cvt_pk_bf16_f32 v{V_S+i}, v{V_S+i}, v{V_S+i}')
    e(f'v_add_f32_dpp v{m+2}, v{m+2}, v{m+2} row_ror:4 {DPPALL}')
    e(f'v_add_f32_dpp v{m+2}, v{m+2}, v{m+2} row_ror:8 {DPPALL}')
    e(f'v_mul_f32 v{m+2}, 0x3d800000, v{m+2}')
    e(f'ds_add_f32 v{m+1}, v{m+2} offset:{L_L}')
    for g in range(NG):
        for tt in range(4):
            xs = V_XR + 4*tt
            e(f'v_and_b32_dpp v{xs+2}, v{V_S+g}, v{V_B0} quad_perm:[0,1,2,3] row_mask:0xf bank_mask:{1<<tt:#x}')
            e(f'v_and_b32_dpp v{xs+3}, v{V_S+g}, v{V_B1} quad_perm:[0,1,2,3] row_mask:0xf bank_mask:{1<<tt:#x}')
        for tt in range(4):
            n = 4*NG + 4*g + tt
            xs = V_XR + 4*tt
            e.wait_vm(('kv', n))
            first = (g == 0 and tt == 0)
            e(f'v_mfma_f32_16x16x32_bf16 {vr(V_D,4)}, {vr(xs+2,4)}, {vr(slot(n),4)}, {"0" if first else vr(V_D,4)}')
            e(f'v_mfma_f32_16x16x32_bf16 {vr(V_D+4,4)}, {vr(xs,4)}, {vr(slot(n),4)}, {"0" if first else vr(V_D+4,4)}')
            top_up(n)
        wo.issue()
        if g == 2:
            e('s_lshl_b32 s62, s59, 9')
            e(f'v_lshl_add_u32 v{t+3}, v{V_LANE}, 2, s62')
            e(f'v_bfe_u32 v{t+4}, v{V_LANE}, 2, 1')
            e(f'v_lshlrev_b32 v{t+4}, 9, v{t+4}')
            e(f'v_bfe_u32 v{t+5}, v{V_LANE}, 3, 1')
            e(f'v_lshl_add_u32 v{t+4}, v{t+5}, 8, v{t+4}')
            e(f'v_lshrrev_b32 v{t+5}, 4, v{V_LANE}')
            e(f'v_lshl_add_u32 v{t+4}, v{t+5}, 6, v{t+4}')
            e('s_lshl_b32 s63, s58, 5')
            e('s_add_u32 s63, s63, s42')
            e('s_mul_i32 s63, s63, 3')
            e('s_add_u32 s64, s63, 96')
            e('s_and_b32 s65, s43, 1')
            e('s_add_u32 s63, s63, s65')
            e('s_add_u32 s63, s63, 1')
            e('s_cmp_eq_u32 s65, 1')
            e('s_cselect_b32 s64, s64, 0x40000')
            e(f's_mul_i32 s67, s67, {TAG_MUL:#x}')
            e(f's_add_u32 s67, s67, {TAG_ADD:#x}')
            e(f's_mul_i32 s68, s68, {TAG_MUL:#x}')
            e(f's_add_u32 s68, s68, {TAG_ADD:#x}')
            e(f'v_mov_b32 v{t+5}, s63')
            e(f'v_mov_b32 v{t+6}, s64')
            e(f'v_mov_b32 v{V_QK+1}, s67')
            e(f'v_mov_b32 v{V_QK+3}, s68')
            e(f'v_and_b32 v{t}, 16, v{V_LANE}')
            e(f'v_cmp_eq_u32 vcc, 0, v{t}')
            e(f'v_cndmask_b32 v{t+5}, v{t+6}, v{t+5}, vcc')
            e(f'v_cndmask_b32 v{V_QK+1}, v{V_QK+3}, v{V_QK+1}, vcc')
            e(f'v_mov_b32 v{V_QK+3}, v{V_QK+1}')
            e(f'v_mov_b32 v{V_QK+5}, v{V_QK+1}')
            e(f'v_mov_b32 v{V_QK+7}, v{V_QK+1}')
            e(f'v_lshlrev_b32 v{t+6}, 4, v{t+5}')
            pub_lane_off(e, t+1, t)
            e(f'v_lshl_add_u32 v{t+5}, v{t+5}, 12, v{t+1}')
            e('s_lshl_b32 s62, s3, 9')
            e(f'v_and_b32 v{t}, 0x1ef, v0')
            e(f'v_cmp_eq_u32 vcc, 0, v{t}')
            e(f'v_mov_b32 v{t}, 0x8000000')
            e(f'v_cndmask_b32 v{t+6}, v{t}, v{t+6}, vcc')
            e(f'v_bfe_u32 v{t+2}, v{V_LANE}, 4, 1')
            e(f'v_lshlrev_b32 v{t+2}, 2, v{t+2}')
    while wo.pos < 16: wo.issue()
    for r in range(4): e(f'v_permlane32_swap_b32 v{V_D+r}, v{V_D+4+r}')
    for r in range(4): e(f'v_add_f32 v{V_D+r}, v{V_D+r}, v{V_D+4+r}')
    e(f'v_permlane16_swap_b32 v{V_D}, v{V_D+2}')
    e(f'v_permlane16_swap_b32 v{V_D+1}, v{V_D+3}')
    e(f'v_add_f32 v{V_D}, v{V_D}, v{V_D+2}')
    e(f'v_add_f32 v{V_D+1}, v{V_D+1}, v{V_D+3}')
    e(f'ds_add_f32 v{t+3}, v{V_D} offset:{L_ACC}')
    e(f'ds_add_f32 v{t+3}, v{V_D+1} offset:{L_ACC+256}')
    e('s_waitcnt lgkmcnt(0)')
    stamp(e, 4)
    e('s_barrier')
    stamp(e, 5)
    R = V_S
    e(f'ds_read_b32 v{V_QK+4}, v{t+2} offset:{L_M}')
    e(f'ds_read_b32 v{V_QK+6}, v{t+2} offset:{L_L}')
    for i in range(4): e(f'ds_read_b128 {vr(R+4*i,4)}, v{t+4} offset:{L_ACC+16*i}')
    e(f's_mov_b32 s63, {WS_ML}')
    e('s_waitcnt lgkmcnt(4)')
    e(f'v_mul_f32 v{V_QK+4}, s61, v{V_QK+4}')
    e(f'buffer_store_dwordx4 {vr(V_QK+4,4)}, v{t+6}, {srd(S_WS)}, s63 offen sc1')
    e('s_waitcnt lgkmcnt(0)')
    for i in range(8): e(f'v_cvt_pk_bf16_f32 v{V_XV+i}, v{R+2*i}, v{R+2*i+1}')
    for i in range(16):
        e.wait_vm(('wo', i))
        gemv_step(e, i, V_XV + i//2, V_W + 4*i, i == 0)
    fold_pub(e, V_QK)
    e(f'buffer_store_dwordx4 {vr(V_QK,4)}, v{t+5}, {srd(S_WS)}, s62 offen sc1')
    stamp_store(e)
    e('s_endpgm')

def gen_B(e, P):
    V_S = 104; V_RING = 136
    RC = P.rcB; LEAD = P.leadB
    assert V_RING + 4*RC <= 256 and LEAD <= RC
    kvf = P.kvflags; wf = P.wflags
    t = V_T
    if STAMPS or SPIN: e('s_memrealtime s[70:71]')
    e('s_load_dwordx8 s[4:11], s[0:1], 40')
    e('s_load_dwordx2 s[12:13], s[0:1], 72')
    e('s_load_dwordx2 s[14:15], s[0:1], 96')
    e(f'v_lshrrev_b32 v{V_T}, 6, v0')
    e(f'v_and_b32 v{V_LANE}, 63, v0')
    e(f'v_readfirstlane_b32 s3, v{V_T}')
    e(f'v_lshrrev_b32 v{t}, 4, v{V_LANE}')
    e(f'v_bfe_u32 v{t+1}, v{V_LANE}, 3, 1')
    e(f'v_and_b32 v{t+2}, 7, v{V_LANE}')
    e(f'v_lshlrev_b32 v{V_WQOFF}, 21, v{t+1}')
    e(f'v_lshl_add_u32 v{V_WQOFF}, v{t}, 19, v{V_WQOFF}')
    e(f'v_lshl_add_u32 v{V_WQOFF}, v{t+2}, 4, v{V_WQOFF}')
    e(f'v_lshlrev_b32 v{t+4}, 9, v{t+1}')
    e(f'v_lshl_add_u32 v{t+4}, v{t}, 7, v{t+4}')
    e('s_lshl_b32 s52, s40, 10')
    e('s_lshl_b32 s53, s41, 10')
    e('s_lshl_b32 s54, s3, 7')
    e('s_add_u32 s58, s53, s54')
    e(f's_and_b32 s60, s40, {P.rotB}')
    e('s_lshl_b32 s59, s60, 17')
    e('s_add_u32 s53, s58, s59')
    e('s_lshl_b32 s63, s60, 5')
    e('s_waitcnt lgkmcnt(0)')
    make_srd(e, S_X, 4, 5, size=4096)
    make_srd(e, S_WQ, 10, 11, size=512*8192)
    def slot(n): return V_RING + 4*(n % RC)
    def ld(n):
        def f(tag):
            if n < 64:
                e(f'buffer_load_dwordx4 {vr(slot(n),4)}, v{V_WQOFF}, {srd(S_WQ)}, s53 offen {wf}'.rstrip(), tag=tag)
                if n % 16 == 15 and n < 63:
                    e(f's_xor_b32 s53, s59, {((n+1)//16) << 17:#x}')
                    e('s_add_u32 s53, s53, s58')
                elif n < 63: e('s_addk_i32 s53, 0x2000')
            elif n < 128:
                isv = n >= 96; k = (n - 64) % 32
                so = 's56' if isv else 's55'
                e(f'buffer_load_dwordx4 {vr(slot(n),4)}, v{V_VOFF if isv else V_KOFF}, {srd(S_V if isv else S_K)}, {so} offen offset:{(k%4)*1024} {kvf}'.rstrip(), tag=tag)
                if k % 4 == 3 and k < 31: e(f's_addk_i32 {so}, 0x1000')
            else:
                e(f'buffer_load_dwordx4 {vr(slot(n),4)}, v{V_WOOFF}, {srd(S_WO)}, s57 offen {wf}'.rstrip(), tag=tag)
                if n % 16 == 15 and n < 191:
                    e(f's_xor_b32 s57, s59, {((n+1-128)//16) << 17:#x}')
                    e('s_add_u32 s57, s57, s62')
                elif n < 191: e('s_addk_i32 s57, 0x2000')
        return f
    st = Stream(e)
    for n in range(192): st.add(n, ld(n))
    for i in range(8):
        if i % 2 == 0:
            e(f's_xor_b32 s46, s63, {16*i}')
            e('s_add_u32 s46, s46, s52')
        e(f'buffer_load_dwordx4 {vr(V_XV+4*i,4)}, v{t+4}, {srd(S_X)}, s46 offen offset:{16*(i%2)}', tag=f'x{i}')
        if i == 0: st.issue(4)
    st.issue(4)
    e('s_lshl_b32 s47, s40, 23')
    e('s_lshl_b32 s50, s41, 20')
    e('s_add_u32 s47, s47, s50')
    e('s_lshl_b32 s50, s3, 15')
    e('s_add_u32 s47, s47, s50')
    e(f's_add_u32 s47, s47, {3072*256}')
    make_srd(e, S_K, 6, 7, off='s47', size=32768)
    make_srd(e, S_V, 8, 9, off='s47', size=32768)
    make_srd(e, S_WO, 12, 13, size=4096*1024)
    make_srd(e, S_WS, 14, 15, size=WS_SIZE)
    e('s_lshl_b32 s66, s40, 2')
    e(f's_add_u32 s66, s66, {WS_EP}')
    e('s_load_dword s67, s[14:15], s66')
    e('s_load_dwordx2 s[64:65], s[0:1], 80')
    e('s_mov_b32 s55, 0'); e('s_mov_b32 s56, 0')
    e('s_lshl_b32 s62, s41, 19')
    e('s_add_u32 s62, s62, s54')
    e('s_add_u32 s57, s62, s59')
    e(f's_mov_b32 s61, {CSCALE:#x}')
    e(f'v_lshlrev_b32 v{V_WOOFF}, 12, v{t+1}')
    e(f'v_lshl_add_u32 v{V_WOOFF}, v{t}, 10, v{V_WOOFF}')
    e(f'v_lshl_add_u32 v{V_WOOFF}, v{t+2}, 4, v{V_WOOFF}')
    e(f'v_bfe_u32 v{t+2}, v{V_LANE}, 2, 2')
    e(f'v_and_b32 v{t+3}, 3, v{V_LANE}')
    e(f'v_lshlrev_b32 v{V_KOFF}, 8, v{t+2}')
    e(f'v_lshl_add_u32 v{V_KOFF}, v{t}, 6, v{V_KOFF}')
    e(f'v_lshl_add_u32 v{V_KOFF}, v{t+3}, 4, v{V_KOFF}')
    e(f'v_lshlrev_b32 v{V_VOFF}, 4, v{V_LANE}')
    lds_init(e)
    lane_consts_late(e)
    def top_up(consumed, lead=LEAD):
        while st.pos < min(len(st.items), consumed + 1 + lead): st.issue()
    e.wait_vm('x7')
    for n in range(64):
        e.wait_vm(n)
        gemv_step(e, n, V_XV + n//2, slot(n), n == 0)
        top_up(n)
    top_up(63, RC)
    fold_rg(e)
    e(f'v_cvt_pk_bf16_f32 v{V_D}, v{V_D}, v{V_D+1}')
    e(f'v_cvt_pk_bf16_f32 v{V_D+1}, v{V_D+2}, v{V_D+3}')
    e(f'v_and_b32 v{t}, 7, v{V_LANE}')
    e(f'v_lshlrev_b32 v{t}, 4, v{t}')
    e(f'v_lshrrev_b32 v{t+1}, 5, v{V_LANE}')
    e(f'v_lshl_add_u32 v{t}, v{t+1}, 3, v{t}')
    e(f'v_and_b32 v{t+1}, 8, v{V_LANE}')
    e(f'v_lshl_add_u32 v{t}, v{t+1}, 7, v{t}')
    e(f'v_add_u32 v{t}, s54, v{t}')
    e(f'ds_write_b64 v{t}, {vr(V_D,2)} offset:{L_QP}')
    e('s_waitcnt lgkmcnt(0)')
    stamp(e, 1)
    e('s_barrier')
    e(f'ds_read_b128 {vr(V_Q,4)}, v{V_KOFF} offset:{L_QP}')
    e('s_waitcnt lgkmcnt(0)')
    for k in range(32):
        n = 64 + k
        d = V_QK + 4*(k & 1)
        e.wait_vm(n)
        e(f'v_mfma_f32_16x16x32_bf16 {vr(d,4)}, {vr(slot(n),4)}, {vr(V_Q,4)}, 0')
        top_up(n)
        if k > 0: diag_sum(e, V_S + k - 1, V_QK + 4*((k-1) & 1))
    top_up(95, RC)
    diag_sum(e, V_S + 31, V_QK + 4)
    m = V_T
    e(f'v_max3_f32 v{m}, v{V_S}, v{V_S+1}, v{V_S+2}')
    for i in range(3, 31, 2): e(f'v_max3_f32 v{m}, v{m}, v{V_S+i}, v{V_S+i+1}')
    e(f'v_max_f32 v{m}, v{m}, v{V_S+31}')
    e(f'v_and_b32 v{m+1}, 12, v{V_LANE}')
    e(f'ds_max_f32 v{m+1}, v{m} offset:{L_M}')
    e('s_waitcnt lgkmcnt(0)')
    stamp(e, 2)
    e('s_barrier')
    stamp(e, 3)
    e(f'ds_read_b32 v{m}, v{m+1} offset:{L_M}')
    e('s_waitcnt lgkmcnt(0)')
    e(f'v_mul_f32 v{m}, s61, v{m}')
    for i in range(32): e(f'v_fma_f32 v{V_S+i}, v{V_S+i}, s61, -v{m}')
    for i in range(32): e(f'v_exp_f32 v{V_S+i}, v{V_S+i}')
    e(f'v_add_f32 v{m+2}, v{V_S}, v{V_S+1}')
    for i in range(2, 32): e(f'v_add_f32 v{m+2}, v{m+2}, v{V_S+i}')
    for i in range(32): e(f'v_cvt_pk_bf16_f32 v{V_S+i}, v{V_S+i}, v{V_S+i}')
    e(f'v_mul_f32 v{m+2}, 0x3e800000, v{m+2}')
    e(f'ds_add_f32 v{m+1}, v{m+2} offset:{L_L}')
    for k in range(32):
        n = 96 + k
        xs = V_XR + 4*(k & 3)
        e(f'v_and_b32 v{xs+2}, v{V_S+k}, v{V_B0}')
        e(f'v_and_b32 v{xs+3}, v{V_S+k}, v{V_B1}')
        e.wait_vm(n)
        e(f'v_mfma_f32_16x16x32_bf16 {vr(V_D,4)}, {vr(xs+2,4)}, {vr(slot(n),4)}, {"0" if k==0 else vr(V_D,4)}')
        e(f'v_mfma_f32_16x16x32_bf16 {vr(V_D+4,4)}, {vr(xs,4)}, {vr(slot(n),4)}, {"0" if k==0 else vr(V_D+4,4)}')
        top_up(n)
    top_up(127, RC)
    e(f'v_lshlrev_b32 v{t}, 2, v{V_LANE}')
    for r in range(8): e(f'ds_add_f32 v{t}, v{V_D+r} offset:{L_ACC+256*r}')
    e(f'v_bfe_u32 v{t+1}, v{V_LANE}, 3, 1')
    e(f'v_lshlrev_b32 v{t+1}, 10, v{t+1}')
    e(f'v_lshrrev_b32 v{t+2}, 4, v{V_LANE}')
    e(f'v_lshl_add_u32 v{t+1}, v{t+2}, 8, v{t+1}')
    e('s_lshl_b32 s46, s60, 6')
    e('s_lshl_b32 s47, s60, 2')
    for q in range(4):
        e(f's_xor_b32 s48, s46, {64*q}')
        e(f'v_add_u32 v{V_Q+q}, s48, v{t+1}')
        e(f's_xor_b32 s48, s47, {4*q}')
        e(f'v_mov_b32 v{V_Q+4+q}, s48')
    e('s_waitcnt lgkmcnt(0)')
    stamp(e, 4)
    e('s_barrier')
    for q in range(4): e(f'ds_read_b32 v{V_QK+4+q}, v{V_Q+4+q} offset:{L_L}')
    R = V_S
    for half in range(2):
        for i in range(8): e(f'ds_read_b128 {vr(R+4*i,4)}, v{V_Q+2*half+i//4} offset:{L_ACC+16*(i%4)}')
        e('s_waitcnt lgkmcnt(0)')
        if half == 0:
            for i in range(4): e(f'v_rcp_f32 v{V_QK+4+i}, v{V_QK+4+i}')
        for i in range(32): e(f'v_mul_f32 v{R+i}, v{R+i}, v{V_QK + 4 + 2*half + i//16}')
        for i in range(16): e(f'v_cvt_pk_bf16_f32 v{V_XV+16*half+i}, v{R+2*i}, v{R+2*i+1}')
    e(f's_mul_i32 s68, s67, {TAG_MUL:#x}')
    e(f's_add_u32 s68, s68, {TAG_ADD:#x}')
    pub_lane_off(e, t+5, t)
    e(f'v_and_b32 v{t}, 16, v{V_LANE}')
    e(f'v_lshlrev_b32 v{t}, 23, v{t}')
    e(f'v_add_u32 v{t+5}, v{t+5}, v{t}')
    e(f'v_mov_b32 v{V_QK+1}, s68')
    e(f'v_mov_b32 v{V_QK+3}, s68')
    e('s_lshl_b32 s49, s40, 3')
    e('s_add_u32 s49, s49, s41')
    e('s_lshl_b32 s49, s49, 12')
    e('s_lshl_b32 s63, s3, 9')
    e('s_add_u32 s49, s49, s63')
    e(f's_add_u32 s49, s49, {WS_YB}')
    for k in range(64):
        n = 128 + k
        e.wait_vm(n)
        gemv_step(e, k, V_XV + k//2, slot(n), k == 0)
        top_up(n)
    fold_pub(e, V_QK)
    e(f'buffer_store_dwordx4 {vr(V_QK,4)}, v{t+5}, {srd(S_WS)}, s49 offen sc1')
    stamp(e, 5)
    gen_final(e)
    stamp_store(e)
    e('s_endpgm')

def lane_reduce4(e, a):
    e(f'v_permlane32_swap_b32 v{a}, v{a+2}')
    e(f'v_permlane32_swap_b32 v{a+1}, v{a+3}')
    e(f'v_add_f32 v{a}, v{a}, v{a+2}')
    e(f'v_add_f32 v{a+1}, v{a+1}, v{a+3}')
    e(f'v_permlane16_swap_b32 v{a}, v{a+1}')
    e(f'v_add_f32 v{a}, v{a}, v{a+1}')
    for sh in (8, 4, 2):
        e(f'v_add_f32_dpp v{a}, v{a}, v{a} row_ror:{sh} {DPPALL}')

def poll(e, name, loads, tags, tmp):
    e(f's_mov_b32 s69, {SPIN_CAP}')
    e.label(name)
    for l in loads: e(l)
    e('s_waitcnt vmcnt(0)'); e.vm = []
    def tree(op, dst):
        e(f'{op}3_u32 v{dst}, v{tags[0]}, v{tags[1]}, v{tags[2]}')
        rest = tags[3:]
        while len(rest) >= 2:
            e(f'{op}3_u32 v{dst}, v{dst}, v{rest[0]}, v{rest[1]}'); rest = rest[2:]
        if rest: e(f'{op}_u32 v{dst}, v{dst}, v{rest[0]}')
    tree('v_min', tmp); tree('v_max', tmp+1)
    e(f'v_cmp_ne_u32 vcc, s68, v{tmp}')
    e(f'v_cmp_ne_u32 s[92:93], s68, v{tmp+1}')
    e('s_sub_u32 s69, s69, 1')
    e('s_cselect_b64 s[94:95], 0, -1')
    e('s_or_b64 vcc, vcc, s[92:93]')
    e('s_and_b64 exec, vcc, s[94:95]')
    e(f's_cbranch_scc1 {name}')
    e('s_mov_b64 exec, -1')

def gen_final(e):
    t = V_T
    Y = 136; ML = 160; ACC = 172
    make_srd(e, S_X, 64, 65, size=8192)
    e(f'v_lshrrev_b32 v{t}, 1, v{V_LANE}')
    e(f'v_and_b32 v{t+1}, 1, v{V_LANE}')
    e(f'v_lshlrev_b32 v{t+1}, 5, v{t+1}')
    e(f'v_mul_u32_u24 v{t+2}, 48, v{t}')
    e(f'v_lshl_add_u32 v{t+3}, v{t+2}, 8, v{t+1}')
    e(f'v_lshl_add_u32 v{t+4}, v{t}, 12, v{t+1}')
    e('s_lshl_b32 s46, s41, 9')
    e('s_lshl_b32 s47, s3, 6')
    e('s_add_u32 s46, s46, s47')
    e('s_lshl_b32 s47, s40, 15')
    e('s_add_u32 s47, s47, s46')
    e(f's_add_u32 s47, s47, {WS_YB}')
    e(f's_mul_i32 s48, s40, {96*4096}')
    e('s_add_u32 s48, s48, s46')
    e('s_add_u32 s49, s48, 4096')
    e('s_add_u32 s50, s48, 8192')
    e(f's_mul_i32 s51, s40, 1536')
    e(f's_add_u32 s51, s51, {WS_ML}')
    e('s_add_u32 s52, s51, 16')
    e('s_add_u32 s53, s51, 32')
    e('s_cmp_eq_u32 s40, 0')
    e('s_cselect_b32 s48, s49, s48')
    e('s_cselect_b32 s51, s52, s51')
    e('s_cselect_b32 s54, 0xff800000, 0')
    e('s_cmp_eq_u32 s40, 3')
    e('s_cselect_b32 s50, s49, s50')
    e('s_cselect_b32 s53, s52, s53')
    e('s_cselect_b32 s55, 0xff800000, 0')
    e(f'v_lshrrev_b32 v{t+5}, 4, v{V_LANE}')
    e(f'v_lshlrev_b32 v{t+5}, 1, v{t+5}')
    e(f'v_lshrrev_b32 v{t+6}, 2, v{t+1}')
    e(f'v_add_u32 v{t+5}, v{t+5}, v{t+6}')
    e(f'v_and_b32 v{t+6}, 14, v{V_LANE}')
    e(f'v_lshl_add_u32 v{t+5}, v{t+6}, 20, v{t+5}')
    e('s_lshl_b32 s56, s40, 11')
    e('s_lshr_b32 s57, s46, 2')
    e('s_add_u32 s56, s56, s57')
    for r in range(4): e(f'v_mov_b32 v{Y+2*r}, 0')
    e('s_barrier')
    e('s_mov_b64 exec, 0xffff')
    poll(e, 'L_pollB', [f'buffer_load_dwordx4 {vr(Y+4*i,4)}, v{t+4}, {srd(S_WS)}, s47 offen offset:{16*i} sc1' for i in range(2)],
         [Y+1, Y+3, Y+5, Y+7], ACC+4)
    for r in range(4): e(f'v_mov_b32 v{ACC+r}, v{Y+2*r}')
    lane_reduce4(e, ACC)
    e(f'v_cvt_pk_bf16_f32 v{ACC}, v{ACC}, v{ACC}')
    e(f'buffer_store_short v{ACC}, v{t+5}, {srd(S_X)}, s56 offen offset:1024')
    F = 180
    def tree(op, dst, tags):
        e(f'{op}3_u32 v{dst}, v{tags[0]}, v{tags[1]}, v{tags[2]}')
        rest = tags[3:]
        while len(rest) >= 2:
            e(f'{op}3_u32 v{dst}, v{dst}, v{rest[0]}, v{rest[1]}'); rest = rest[2:]
        if rest: e(f'{op}_u32 v{dst}, v{dst}, v{rest[0]}')
    e(f's_mov_b32 s69, {SPIN_CAP}')
    e('s_mov_b64 s[42:43], -1')
    e('s_mov_b64 s[44:45], 0')
    e.label('L_pollA')
    e('s_mov_b64 exec, s[44:45]')
    e('s_cbranch_execz L_skipY')
    for j in range(3):
        for i in range(2):
            e(f'buffer_load_dwordx4 {vr(Y+8*j+4*i,4)}, v{t+3}, {srd(S_WS)}, s{48+j} offen offset:{16*i} sc1')
    e(f'v_add_f32 v{F}, s54, v{ML}')
    e(f'v_add_f32 v{F+2}, s55, v{ML+8}')
    e(f'v_max3_f32 v{F+3}, v{F}, v{ML+4}, v{F+2}')
    e(f'v_sub_f32 v{F}, v{F}, v{F+3}')
    e(f'v_sub_f32 v{F+1}, v{ML+4}, v{F+3}')
    e(f'v_sub_f32 v{F+2}, v{F+2}, v{F+3}')
    for j in range(3): e(f'v_exp_f32 v{F+j}, v{F+j}')
    e(f'v_mul_f32 v{F+3}, v{F}, v{ML+2}')
    e(f'v_fmac_f32 v{F+3}, v{F+1}, v{ML+6}')
    e(f'v_fmac_f32 v{F+3}, v{F+2}, v{ML+10}')
    e(f'v_rcp_f32 v{F+3}, v{F+3}')
    for j in range(3): e(f'v_mul_f32 v{F+j}, v{F+j}, v{F+3}')
    e.label('L_skipY')
    e('s_mov_b64 exec, s[42:43]')
    e('s_cbranch_execz L_skipML')
    for j in range(3):
        e(f'buffer_load_dwordx4 {vr(ML+4*j,4)}, v{t+2}, {srd(S_WS)}, s{51+j} offen sc1')
    e('s_waitcnt vmcnt(0)')
    tree('v_min', ACC+4, [ML+1+2*i for i in range(6)]); tree('v_max', ACC+5, [ML+1+2*i for i in range(6)])
    e(f'v_cmp_ne_u32 vcc, s68, v{ACC+4}')
    e(f'v_cmp_ne_u32 s[92:93], s68, v{ACC+5}')
    e('s_or_b64 s[42:43], vcc, s[92:93]')
    e.label('L_skipML')
    e('s_andn2_b64 s[90:91], exec, s[42:43]')
    e('s_mov_b64 exec, s[44:45]')
    e('s_waitcnt vmcnt(0)'); e.vm = []
    tree('v_min', ACC+4, [Y+1+2*i for i in range(12)]); tree('v_max', ACC+5, [Y+1+2*i for i in range(12)])
    e(f'v_cmp_ne_u32 vcc, s68, v{ACC+4}')
    e(f'v_cmp_ne_u32 s[92:93], s68, v{ACC+5}')
    e('s_sub_u32 s69, s69, 1')
    e('s_cselect_b64 s[94:95], 0, -1')
    e('s_or_b64 vcc, vcc, s[92:93]')
    e('s_and_b64 s[44:45], s[44:45], vcc')
    e('s_or_b64 s[44:45], s[44:45], s[90:91]')
    e('s_or_b64 s[92:93], s[44:45], s[42:43]')
    e('s_and_b64 s[92:93], s[92:93], s[94:95]')
    e('s_cbranch_scc1 L_pollA')
    e('s_mov_b64 exec, -1')
    for r in range(4): e(f'v_mul_f32 v{ACC+r}, v{Y+2*r}, v{F}')
    for j in (1, 2):
        for r in range(4): e(f'v_fmac_f32 v{ACC+r}, v{Y+8*j+2*r}, v{F+j}')
    lane_reduce4(e, ACC)
    e(f'v_cvt_pk_bf16_f32 v{ACC}, v{ACC}, v{ACC}')
    e(f'buffer_store_short v{ACC}, v{t+5}, {srd(S_X)}, s56 offen')
    e('s_add_u32 s67, s67, 1')
    e('s_or_b32 s46, s41, s3')
    e('s_cmp_eq_u32 s46, 0')
    e('s_cselect_b32 s66, s66, 0x8000000')
    e(f'v_mov_b32 v{ACC+1}, s67')
    e(f'v_lshlrev_b32 v{ACC+2}, 24, v{V_LANE}')
    e(f'buffer_store_dword v{ACC+1}, v{ACC+2}, {srd(S_WS)}, s66 offen sc1')

def gen_reduce(e):
    e('s_cmp_ge_u32 s2, 32')
    e('s_cbranch_scc1 L_red_end')
    e('s_load_dwordx2 s[4:5], s[0:1], 80')
    e('s_load_dwordx2 s[6:7], s[0:1], 96')
    e('s_lshr_b32 s20, s2, 3')
    e('s_and_b32 s21, s2, 7')
    e('v_lshrrev_b32 v1, 4, v0')
    e('v_and_b32 v2, 15, v0')
    e('v_mul_u32_u24 v3, 48, v1')
    e('v_mul_u32_u24 v4, 12288, v1')
    e('v_lshl_add_u32 v4, v2, 4, v4')
    e('v_lshlrev_b32 v5, 11, v1')
    e('v_lshl_add_u32 v5, v2, 4, v5')
    e('v_and_b32 v6, 0x80, v0')
    e('v_lshlrev_b32 v6, 20, v6')
    e('v_add_u32 v5, v5, v6')
    e('s_mul_i32 s22, s20, 768')
    e(f's_add_u32 s22, s22, {WS_ML}')
    e(f's_mul_i32 s23, s20, {96*2048}')
    e('s_lshl_b32 s24, s21, 8')
    e('s_add_u32 s23, s23, s24')
    e('s_lshl_b32 s25, s20, 14')
    e('s_add_u32 s25, s25, s24')
    e(f's_add_u32 s25, s25, {WS_YB}')
    e('s_add_u32 s26, s23, 4096')
    e('s_add_u32 s27, s23, 8192')
    e('s_waitcnt lgkmcnt(0)')
    make_srd(e, 8, 6, 7, size=WS_SIZE)
    make_srd(e, 12, 4, 5, size=8192)
    for i in range(3): e(f'buffer_load_dwordx4 {vr(8+4*i,4)}, v3, s[8:11], s22 offen offset:{16*i}', tag=('ml', i))
    for j in range(6):
        e(f'buffer_load_dwordx4 {vr(20+4*j,4)}, v4, s[8:11], s{[23,26,27][j//2]} offen offset:{2048*(j%2)}', tag=('y', j))
    e(f'buffer_load_dwordx4 {vr(44,4)}, v5, s[8:11], s25 offen', tag='yb')
    e('s_cmp_eq_u32 s20, 0')
    e('s_cselect_b64 s[28:29], -1, 0')
    e('s_cmp_eq_u32 s20, 3')
    e('s_cselect_b64 s[30:31], -1, 0')
    e('v_mov_b32 v6, 0xff800000')
    e('v_mov_b32 v7, 0')
    e('v_lshlrev_b32 v52, 2, v0')
    e('ds_write_b32 v52, v7')
    e.wait_vm(('ml', 2))
    for hh in range(2):
        for j, mk in ((0, 's[28:29]'), (2, 's[30:31]')):
            e(f'v_cndmask_b32 v{8+6*hh+2*j}, v{8+6*hh+2*j}, v6, {mk}')
            e(f'v_cndmask_b32 v{9+6*hh+2*j}, v{9+6*hh+2*j}, v7, {mk}')
    for hh in range(2):
        b = 8 + 6*hh
        e(f'v_max3_f32 v48, v{b}, v{b+2}, v{b+4}')
        for j in range(3): e(f'v_sub_f32 v{b+2*j}, v{b+2*j}, v48')
        for j in range(3): e(f'v_exp_f32 v{b+2*j}, v{b+2*j}')
        e(f'v_mul_f32 v49, v{b}, v{b+1}')
        e(f'v_fmac_f32 v49, v{b+2}, v{b+3}')
        e(f'v_fmac_f32 v49, v{b+4}, v{b+5}')
        e('v_rcp_f32 v49, v49')
        for j in range(3): e(f'v_mul_f32 v{b+2*j}, v{b+2*j}, v49')
    e.wait_vm('yb')
    for hh in range(2):
        for j, mk in ((0, 's[28:29]'), (2, 's[30:31]')):
            for r in range(4):
                y = 20 + 4*(3*hh+j) + r
                e(f'v_cndmask_b32 v{y}, v{y}, v7, {mk}')
    for r in range(4): e(f'v_mul_f32 v{48+r}, v{20+r}, v8')
    for j in range(1, 6):
        for r in range(4): e(f'v_fmac_f32 v{48+r}, v{20+4*j+r}, v{8+2*j}')
    for r in range(4): e(f'v_permlane32_swap_b32 v{48+r}, v{44+r}')
    for r in range(4): e(f'v_add_f32 v{48+r}, v{48+r}, v{44+r}')
    e('v_permlane16_swap_b32 v48, v50')
    e('v_permlane16_swap_b32 v49, v51')
    e('v_add_f32 v48, v48, v50')
    e('v_add_f32 v49, v49, v51')
    e('v_and_b32 v52, 63, v0')
    e('v_lshlrev_b32 v53, 2, v52')
    e('s_waitcnt lgkmcnt(0)')
    e('s_barrier')
    e('ds_add_f32 v53, v48')
    e('ds_add_f32 v53, v49 offset:256')
    e('v_lshrrev_b32 v54, 5, v52')
    e('v_lshlrev_b32 v54, 10, v54')
    e('v_lshl_add_u32 v54, v2, 3, v54')
    e('v_bfe_u32 v55, v52, 4, 1')
    e('v_lshl_add_u32 v54, v55, 2, v54')
    e('v_and_b32 v55, 0xc0, v0')
    e('v_lshlrev_b32 v55, 20, v55')
    e('v_add_u32 v54, v54, v55')
    e('s_lshl_b32 s22, s20, 11')
    e('s_lshl_b32 s23, s21, 7')
    e('s_add_u32 s22, s22, s23')
    e('s_waitcnt lgkmcnt(0)')
    e('s_barrier')
    e('ds_read_b32 v48, v53')
    e('ds_read_b32 v49, v53 offset:256')
    e('s_waitcnt lgkmcnt(0)')
    e('v_cvt_pk_bf16_f32 v48, v48, v49')
    e('buffer_store_dword v48, v54, s[12:15], s22 offen')
    e.label('L_red_end')
    e('s_endpgm')

def kd(name, nv, ns):
    return f""".p2align 6
.amdhsa_kernel {name}
  .amdhsa_next_free_vgpr {nv}
  .amdhsa_next_free_sgpr {ns}
  .amdhsa_accum_offset {(nv+3)//4*4}
  .amdhsa_group_segment_fixed_size 0
  .amdhsa_kernarg_size 104
  .amdhsa_user_sgpr_count 2
  .amdhsa_user_sgpr_kernarg_segment_ptr 1
  .amdhsa_system_sgpr_workgroup_id_x 1
.end_amdhsa_kernel
"""

def main():
    ap = argparse.ArgumentParser()
    ap.add_argument('-o', default=f'cdna_kernels/{NAME}.s')
    ap.add_argument('--rcA', type=int, default=22)
    ap.add_argument('--leadA', type=int, default=12)
    ap.add_argument('--rcB', type=int, default=28)
    ap.add_argument('--leadB', type=int, default=12)
    ap.add_argument('--wo_start', type=int, default=3)
    ap.add_argument('--kvflags', default='nt')
    ap.add_argument('--wflags', default='')
    ap.add_argument('--rotB', type=int, default=3)
    ap.add_argument('--stamps', action='store_true')
    ap.add_argument('--spin', type=int, default=0)
    P = ap.parse_args()
    global STAMPS, SPIN
    SPIN = P.spin
    STAMPS = P.stamps
    for W in range(57):
        assert (W*128*9363) >> 16 == W*128//7
    hdr = open(f'cdna_kernels/{NAME}.s.ref').read().split('; Override launch')[0]
    out = [hdr.rstrip('\n')]
    out.append(f'; @launch grid=(256,1,1) block=(512,1,1) lds={LDS_BYTES}')
    out.append('.amdgcn_target "amdgcn-amd-amdhsa--gfx950"\n.text')
    out.append(f'.globl {NAME}_kernel\n.p2align 8\n.type {NAME}_kernel,@function\n{NAME}_kernel:')
    e = Emitter()
    e('s_cmp_ge_u32 s2, 256')
    e('s_cbranch_scc1 L_exit')
    e('s_lshr_b32 s40, s2, 3')
    e('s_and_b32 s41, s2, 7')
    e('s_cmp_lt_u32 s40, 4')
    e('s_cbranch_scc1 L_pathB')
    gen_A(e, P)
    e.label('L_exit')
    e('s_endpgm')
    out.append(e.text())
    nA = e.nins
    e = Emitter()
    e.raw('.p2align 6')
    e.label('L_pathB')
    gen_B(e, P)
    out.append(e.text())
    nB = e.nins
    out.append('.section .rodata,"a"')
    out.append(kd(f'{NAME}_kernel', 256, 100))
    open(P.o, 'w').write('\n'.join(out))
    print('instructions: A', nA, 'B', nB, 'R', e.nins, file=sys.stderr)

main()
```
